```python
import torch

def _softmax(x, axis=-1):
    return torch.softmax(x, dim=axis)
def _gelu(x):
    return torch.nn.functional.gelu(x, approximate="tanh")
def _silu(x):
    return torch.nn.functional.silu(x)
def _sigmoid(x):
    return torch.sigmoid(x)
def _layernorm(x, axis=-1, eps=1e-5):
    m = x.mean(dim=axis, keepdim=True)
    v = x.var(dim=axis, keepdim=True, unbiased=False)
    return (x - m) / torch.sqrt(v + eps)
def _scatter_add(tgt, idx, src, axis=0):
    return tgt.clone().index_add_(axis, idx, src)
def _segment_sum(src, seg, n):
    out = torch.zeros((n,) + src.shape[1:], dtype=src.dtype)
    return out.index_add_(0, seg, src)
def _pad(x, pw):
    flat = tuple(v for pair in reversed(pw) for v in pair)
    return torch.nn.functional.pad(x, flat)

kernel_name = 'gated_mix__ssm_conv_h3__compressed_kv_cla__prompt'

def setup_inputs():

    _w = (lambda a: (lambda t: t.to(torch.bfloat16) if t.is_floating_point() else t)(torch.as_tensor(a)))
    def _A_setup():
        B, S, D = 1, 2048, 576
        ks = 4
        return {
            "q": _w((lambda *s: torch.randn(*s, dtype=torch.bfloat16) * 0.05)(B, S, D)),
            "k": _w((lambda *s: torch.randn(*s, dtype=torch.bfloat16) * 0.4)(B, S, D)),
            "v": _w((lambda *s: torch.randn(*s, dtype=torch.bfloat16) * 0.4)(B, S, D)),
            "shift_k": _w((lambda *s: torch.randn(*s, dtype=torch.bfloat16) * 0.4)(D, ks) * 0.5),
            "ssm_k": _w((lambda *s: torch.randn(*s, dtype=torch.bfloat16) * 0.8)(D, S) * (1.0 / S ** 0.5)),
            "ssm_D": _w((lambda *s: torch.randn(*s, dtype=torch.bfloat16) * 0.4)(D)),
        }
    _A_in = _A_setup()

    def _B_setup():
        B, H, Sq, Sk, D, M = 1, 32, 2048, 2048, 128, 576
        Dc = 4 * D
        return {
            "x": _w((lambda *s: torch.randn(*s, dtype=torch.bfloat16) * 0.05)(B, Sq, M)),
            "c_kv": _w((lambda *s: torch.randn(*s, dtype=torch.bfloat16) * 0.4)(B, Sk, Dc)),
            "w_q": _w((lambda *s: torch.randn(*s, dtype=torch.bfloat16) * 6.4)(M, H, D) * (M ** -0.5)),
            "w_uk": _w((lambda *s: torch.randn(*s, dtype=torch.bfloat16) * 6.4)(Dc, H, D) * (Dc ** -0.5)),
            "w_uv": _w((lambda *s: torch.randn(*s, dtype=torch.bfloat16) * 0.4)(Dc, H, D) * (Dc ** -0.5)),
            "w_o": _w((lambda *s: torch.randn(*s, dtype=torch.bfloat16) * 0.4)(H, D, M) * ((H * D) ** -0.5)),
        }
    _B_in = _B_setup()

    return {
        "A_q": _A_in["q"],
        "A_k": _A_in["k"],
        "A_v": _A_in["v"],
        "A_shift_k": _A_in["shift_k"],
        "A_ssm_k": _A_in["ssm_k"],
        "A_ssm_D": _A_in["ssm_D"],
        "B_x": _B_in["x"],
        "B_c_kv": _B_in["c_kv"],
        "B_w_q": _B_in["w_q"],
        "B_w_uk": _B_in["w_uk"],
        "B_w_uv": _B_in["w_uv"],
        "B_w_o": _B_in["w_o"],
        "gate_w": _w((lambda *s: torch.randn(*s, dtype=torch.bfloat16) * 0.05)(576) * 16.0),
    }

def reference(A_q, A_k, A_v, A_shift_k, A_ssm_k, A_ssm_D, B_x, B_c_kv, B_w_q, B_w_uk, B_w_uv, B_w_o, gate_w):
    def _A_ref(q, k, v, shift_k, ssm_k, ssm_D):
        B, S, D = q.shape
        ks = shift_k.shape[-1]
        k_pad = _pad(k, ((0, 0), (ks - 1, 0), (0, 0)))
        k_shift = torch.zeros_like(k)
        for t in range(ks):
            k_shift = k_shift + k_pad[:, t:t + S, :] * shift_k[:, ks - 1 - t][None, None, :]
        kv = k_shift * v
        L = 2 * S
        kv_pad = _pad(kv, ((0, 0), (0, S), (0, 0)))
        kf_pad = _pad(ssm_k, ((0, 0), (0, S)))
        kv_f = (lambda x, axes=(-2,-1): torch.fft.rfft2(x.float(), dim=axes))(kv_pad[:, None, :, :], axes=(1, 2))
        kf_f = (lambda x, axes=(-2,-1): torch.fft.rfft2(x.float(), dim=axes))(kf_pad[:, None, :], axes=(1, 2))
        kf_f = (lambda x, *d: x.permute(*d))(kf_f, 1, 2, 0)
        y_f = kv_f * kf_f[None, :, :, :]
        y = (lambda x, s, axes=(-2,-1): torch.fft.irfft2(x, s=s, dim=axes).to(torch.bfloat16))(y_f, (1, L), axes=(1, 2))[:, 0, :S, :]
        y = y + kv * ssm_D[None, None, :]
        return q * y

    def _B_ref(x, c_kv, w_q, w_uk, w_uv, w_o):
        B, Sq, M = x.shape[0], x.shape[1], x.shape[2]
        Sk = c_kv.shape[1]
        H, D = w_q.shape[1], w_q.shape[2]
        q = torch.einsum("bqm,mhd->bhqd", x, w_q)
        k = torch.einsum("bkc,chd->bhkd", c_kv, w_uk)
        v = torch.einsum("bkc,chd->bhkd", c_kv, w_uv)
        scores = torch.einsum("bhqd,bhkd->bhqk", q, k) * (D ** -0.5)
        off = Sk - Sq
        qi = torch.arange(Sq)[:, None]
        kj = torch.arange(Sk)[None, :]
        cmask = kj <= (qi + off)
        scores = torch.where(cmask[None, None], scores, -1e9)
        p = _softmax(scores, axis=-1)
        ctx = torch.einsum("bhqk,bhkd->bhqd", p, v)
        return torch.einsum("bhqd,hdm->bqm", ctx, w_o)

    x = A_q
    g = _sigmoid((x * gate_w).sum(-1, keepdims=True))
    a = _A_ref(x, A_k, A_v, A_shift_k, A_ssm_k, A_ssm_D)
    b = _B_ref(x, B_c_kv, B_w_q, B_w_uk, B_w_uv, B_w_o)
    return g * a + (1 - g) * b
```

```python
import re

def regs_of(tok):
    tok = tok.strip()
    neg = tok.lstrip('-')
    m = re.fullmatch(r'(?:abs\()?([vas])(\d+)\)?', neg)
    if m: return {(m.group(1), int(m.group(2)))}
    m = re.fullmatch(r'([vas])\[(\d+):(\d+)\]', neg)
    if m: return {(m.group(1), i) for i in range(int(m.group(2)), int(m.group(3))+1)}
    if neg == 'vcc': return {('s', 'vcc')}
    if neg == 'exec': return {('s', 'exec')}
    if neg == 'm0': return {('s', 'm0')}
    return set()

TRANS = ('v_exp_f32', 'v_log_f32', 'v_rcp_f32', 'v_rsq_f32', 'v_sqrt_f32', 'v_sin_f32', 'v_cos_f32')

class Ins:
    __slots__ = ('text', 'op', 'ops', 'kind', 'w', 'r', 'rc', 'rab', 'passes', 'target', 'states', 'wide_store_data')
    def __init__(self, text):
        self.text = text
        t = text.split(';')[0].strip()
        self.target = None; self.passes = 0; self.rc = set(); self.rab = set(); self.wide_store_data = set()
        self.w = set(); self.r = set(); self.states = 1
        if t.endswith(':'):
            self.kind = 'label'; self.op = t[:-1]; self.ops = []; self.states = 0; return
        if t.startswith('.') or t == '':
            self.kind = 'dir'; self.op = t; self.ops = []; self.states = 0; return
        p = t.split(None, 1)
        op = p[0]; self.op = op
        rest = p[1] if len(p) > 1 else ''
        ops = [x.strip() for x in rest.split(',')] if rest else []
        mods = []
        if ops:
            l = ops[-1].split()
            ops[-1] = l[0]; mods = l[1:]
        self.ops = ops
        base = re.sub(r'_(e32|e64|dpp|sdwa)$', '', op)
        R = lambda *idx: set().union(*[regs_of(ops[i]) for i in idx if i < len(ops)]) if idx else set()
        if op.startswith('v_mfma'):
            self.kind = 'mfma'; self.w = R(0); self.rab = R(1, 2); self.rc = R(3); self.r = self.rab | self.rc
            self.passes = 4 if '16x16x32' in op else 8
        elif op.startswith('v_'):
            self.kind = 'valu'
            if base.startswith('v_cmp'):
                self.w = R(0); self.r = R(*range(1, len(ops)))
            elif base in ('v_readfirstlane_b32', 'v_readlane_b32'):
                self.w = R(0); self.r = R(*range(1, len(ops)))
            elif base.startswith('v_permlane'):
                self.w = R(0, 1); self.r = R(0, 1)
            elif base in ('v_add_co_u32', 'v_sub_co_u32', 'v_addc_co_u32'):
                self.w = R(0, 1); self.r = R(*range(2, len(ops)))
            else:
                self.w = R(0); self.r = R(*range(1, len(ops)))
                if base in ('v_fmac_f32', 'v_dot2c_f32_bf16', 'v_writelane_b32') or 'dpp' in op or 'sdwa' in op: self.r |= R(0)
        elif op.startswith('ds_'):
            self.kind = 'ds'
            if 'read' in op or 'permute' in op or 'swizzle' in op:
                self.w = R(0); self.r = R(*range(1, len(ops)))
                if 'd16' in op: self.r |= R(0)
            else: self.r = R(*range(len(ops)))
        elif op.startswith('buffer_') or op.startswith('global_'):
            self.kind = 'vmem'
            islds = 'lds' in mods or '_lds_' in op
            if islds:
                self.r = R(*range(len(ops))) | {('s', 'm0')}
            elif 'load' in op:
                self.w = R(0); self.r = R(*range(1, len(ops)))
                if 'd16' in op: self.r |= R(0)
            elif 'atomic' in op:
                self.r = R(*range(len(ops)))
                if 'sc0' in mods: self.w = R(0)
            elif 'store' in op:
                self.r = R(*range(len(ops)))
                if 'x4' in op or 'x3' in op:
                    self.wide_store_data = R(0) if op.startswith('buffer_') else R(1)
            else:
                pass
        elif op.startswith('s_'):
            self.kind = 'salu'
            if op == 's_nop': self.states = int(ops[0], 0) + 1
            elif op.startswith('s_cbranch') or op == 's_branch':
                self.kind = 'branch'; self.target = ops[0]
            elif op == 's_endpgm': self.kind = 'end'
            elif op.startswith('s_cmp') or op.startswith('s_bitcmp') or op in ('s_waitcnt', 's_barrier', 's_setprio', 's_sleep'):
                self.r = R(*range(len(ops)))
            else:
                self.w = R(0); self.r = R(*range(1, len(ops)))
                if 'saveexec' in op: self.w |= {('s', 'exec')}
        else:
            raise ValueError("unknown instr: " + text)

def isvec(s): return {x for x in s if x[0] in 'va'}
def issc(s): return {x for x in s if x[0] == 's'}

def need(p, c):
    n = 0
    pb = re.sub(r'_(e32|e64|dpp|sdwa)$', '', p.op); cb = re.sub(r'_(e32|e64|dpp|sdwa)$', '', c.op)
    if p.kind == 'valu':
        wv = isvec(p.w); ws = issc(p.w)
        if c.kind == 'mfma' and wv & c.r: n = max(n, 2)
        if c.kind == 'valu':
            if pb in TRANS and cb not in TRANS and wv & c.r: n = max(n, 1)
            if cb.startswith('v_permlane') and wv & c.r: n = max(n, 2)
            if 'dpp' in c.op and wv & c.r: n = max(n, 2)
            if cb in ('v_readfirstlane_b32', 'v_readlane_b32') and wv & c.r: n = max(n, 1)
            if ws & c.r: n = max(n, 4 if cb in ('v_readlane_b32', 'v_writelane_b32') else 2)
            if 'sdwa' in p.op and wv & (c.r | c.w): n = max(n, 1)
        if pb in TRANS and c.kind in ('vmem', 'ds') and wv & c.r: n = max(n, 1)
        if c.kind == 'vmem' and ws & c.r: n = max(n, 5)
        if c.kind in ('salu', 'branch') and (ws & c.r): n = max(n, 1)
    elif p.kind == 'mfma':
        big = {4: 8, 8: 12}[p.passes]
        if c.kind == 'mfma':
            if p.w & c.rab: n = max(n, big)
            if p.w & c.rc:
                if not (p.w == c.rc and p.passes == c.passes): n = max(n, {4: 6, 8: 10}[p.passes])
            elif p.w & c.w: n = max(n, big)
        elif c.kind in ('valu', 'vmem', 'ds'):
            if p.w & (c.r | c.w): n = max(n, big)
            if c.kind == 'valu' and p.rc & c.w: n = max(n, {4: 3, 8: 7}[p.passes])
            if c.kind in ('vmem', 'ds') and p.rc & c.w: n = max(n, {4: 3, 8: 7}[p.passes])
    elif p.kind == 'salu':
        if ('s', 'm0') in p.w and c.kind == 'vmem' and ('s', 'm0') in c.r: n = max(n, 1)
        if ('s', 'exec') in p.w and c.kind == 'valu' and 'dpp' in c.op: n = max(n, 1)
    elif p.kind == 'vmem':
        if p.wide_store_data and c.kind in ('valu',) and p.wide_store_data & c.w: n = max(n, 2)
        if p.wide_store_data and c.kind in ('ds', 'vmem', 'mfma') and p.wide_store_data & c.w: n = max(n, 1)
    return n

class Prog:
    def __init__(self): self.l = []
    def __call__(self, s):
        if isinstance(s, (list, tuple)):
            for x in s: self(x)
        else: self.l.append(Ins(s))
    def label(self, s): self.l.append(Ins(s + ':'))
    def fix_hazards(self, verbose=False):
        MAXD = 12
        nfix = 0
        while True:
            L = self.l
            labels = {x.op: i for i, x in enumerate(L) if x.kind == 'label'}
            ins_at = {}
            for i, p in enumerate(L):
                if p.kind in ('label', 'dir', 'branch', 'end', 'ds'): continue
                if p.kind == 'salu' and not ({('s', 'm0'), ('s', 'exec')} & p.w): continue
                if p.kind == 'vmem' and not p.wide_store_data: continue
                stack = [(i+1, 0)]; seen = {}
                while stack:
                    j, d = stack.pop()
                    while j < len(L) and d < MAXD:
                        if seen.get(j, 99) <= d: break
                        seen[j] = d
                        c = L[j]
                        if c.kind == 'end': break
                        if c.kind not in ('label', 'dir'):
                            n = need(p, c)
                            if n > d:
                                ins_at[j] = max(ins_at.get(j, 0), n - d)
                                if verbose: print("hazard:", p.text, "->", c.text, "need", n, "have", d)
                        d += c.states
                        if c.kind == 'branch':
                            if c.target in labels: stack.append((labels[c.target], d))
                            if c.op == 's_branch': break
                        j += 1
            if not ins_at: break
            out = []; last = -100
            for j, x in enumerate(L):
                if j in ins_at and j - last > MAXD:
                    out.append(Ins(f"s_nop {ins_at[j]-1}")); nfix += 1; last = j
                out.append(x)
            self.l = out
        return nfix
    def text(self):
        o = []
        for x in self.l:
            o.append(x.text if x.kind in ('label', 'dir') else "  " + x.text)
        return "\n".join(o) + "\n"

def kernel_head(name):
    return f".text\n.globl {name}\n.p2align 8\n.type {name},@function\n{name}:\n"
def kernel_desc(name, vgpr, accum, sgpr=102):
    return f""".section .rodata,"a"
.p2align 6
.amdhsa_kernel {name}
  .amdhsa_next_free_vgpr {vgpr}
  .amdhsa_next_free_sgpr {sgpr}
  .amdhsa_accum_offset {accum}
  .amdhsa_group_segment_fixed_size 0
  .amdhsa_kernarg_size 128
  .amdhsa_user_sgpr_count 2
  .amdhsa_user_sgpr_kernarg_segment_ptr 1
  .amdhsa_system_sgpr_workgroup_id_x 1
  .amdhsa_float_denorm_mode_32 3
.end_amdhsa_kernel
"""
def v(n, k=1): return f"v{n}" if k == 1 else f"v[{n}:{n+k-1}]"
def a(n, k=1): return f"a{n}" if k == 1 else f"a[{n}:{n+k-1}]"
def s(n, k=1): return f"s{n}" if k == 1 else f"s[{n}:{n+k-1}]"
def mfma(d, A, B, C): return f"v_mfma_f32_16x16x32_bf16 {d}, {A}, {B}, {C}"

def weave(mf, streams, cap=2):
    n = len(mf)
    load = [0]*n
    for i in range(1, n): load[i-1] += len(mf[i][0])
    gaps = [[] for _ in range(n)]
    for st in streams:
        prev = 0
        for (cost, ins, want, lo, hi) in st:
            lo = max(lo, prev); hi = max(min(hi, n-1), lo)
            want = min(max(want, lo), hi)
            best = None
            for dlt in range(0, n):
                for g in (want + dlt, want - dlt):
                    if lo <= g <= hi and load[g] + cost <= cap:
                        best = g; break
                if best is not None: break
            if best is None:
                best = min(range(lo, hi+1), key=lambda g: (load[g], abs(g - want)))
            gaps[best] += ins; load[best] += cost; prev = best
    out = []
    for i, (pre, m) in enumerate(mf):
        out += pre; out.append(m); out += gaps[i]
    return out
```

```python
from core import *
from layout import *

def srd(p, d, b, size):
    p(f"s_mov_b32 s{d}, s{b}"); p(f"s_and_b32 s{d+1}, s{b+1}, 0xffff"); p(f"s_mov_b32 s{d+2}, {size}"); p(f"s_mov_b32 s{d+3}, 0x20000")

class VM:
    def __init__(self): self.q = []
    def issue(self, tag): self.q.append(tag)
    def wait_for(self, pred):
        last = -1
        for i, t in enumerate(self.q):
            if pred(t): last = i
        n = len(self.q) - 1 - last
        self.q = self.q[last+1:]
        return n

def gen_k1(name, store_flags="sc1", stamps=False):
    p = Prog()
    p("s_cmp_ge_u32 s2, 256"); p(f"s_cbranch_scc1 {name}_end")
    p(f"s_load_dwordx2 s[4:5], s[0:1], {ARG['ckv']}")
    p(f"s_load_dwordx4 s[8:11], s[0:1], {ARG['wuk']}")
    p(f"s_load_dwordx2 s[6:7], s[0:1], {ARG['ws']}")
    if stamps: p("s_memrealtime s[60:61]")
    p("v_lshrrev_b32 v1, 6, v0"); p("v_and_b32 v0, 63, v0")
    p("v_readfirstlane_b32 s24, v1")
    p("s_and_b32 s25, s2, 7"); p("s_lshr_b32 s26, s2, 3")
    p("s_and_b32 s27, s26, 3"); p("s_lshl_b32 s25, s25, 2"); p("s_add_u32 s25, s25, s27")
    p("s_lshr_b32 s26, s26, 2")
    L16, L8 = 2, 3
    p("v_lshrrev_b32 v2, 4, v0"); p("v_lshrrev_b32 v3, 3, v0")
    VA = 4
    VW = 8
    p("v_and_b32 v12, 7, v0")
    for i in range(4):
        p(f"v_add_u32 v13, {4*(i&1)}, v2"); p("v_xor_b32 v13, v13, v12"); p("v_lshlrev_b32 v13, 4, v13")
        p(f"v_lshl_add_u32 v13, v3, 10, v13"); p(f"v_add_u32 v{VA+i}, {i*8192 - i*1024}, v13")
    p("v_and_b32 v12, 15, v0"); p("v_lshrrev_b32 v14, 1, v12"); p("v_and_b32 v15, 1, v12")
    for i in range(4):
        p(f"v_add_u32 v13, {4*((i>>1)&1)}, v2"); p("v_xor_b32 v13, v13, v14"); p("v_lshl_add_u32 v13, v13, 1, v15"); p("v_lshlrev_b32 v13, 4, v13")
        p(f"v_lshl_add_u32 v13, v2, 13, v13"); p(f"v_add_u32 v{VW+i}, {i*32768 - i*1024}, v13")
    RA = 16
    p("s_lshr_b32 s27, s24, 1"); p("s_lshl_b32 s27, s27, 14"); p("s_add_u32 s27, s27, 65536")
    p("v_lshrrev_b32 v13, 1, v12")
    p("v_xor_b32 v13, v13, v2")
    p("v_lshlrev_b32 v13, 4, v13"); p("v_lshl_add_u32 v13, v12, 7, v13"); p(f"v_add_u32 v{RA}, s27, v13")
    p(f"v_xor_b32 v{RA+1}, 64, v{RA}")
    p(f"v_add_u32 v{RA+2}, 0x10000, v{RA}"); p(f"v_add_u32 v{RA+3}, 0x10000, v{RA+1}")
    RW = 20
    p("v_lshrrev_b32 v13, 2, v12")
    p("v_and_b32 v14, 1, v2"); p("v_lshl_add_u32 v14, v14, 2, v13")
    p("v_lshl_add_u32 v13, v2, 3, v13"); p("v_lshlrev_b32 v13, 8, v13")
    p("v_and_b32 v15, 3, v0"); p("v_lshl_add_u32 v13, v15, 3, v13")
    p("s_and_b32 s27, s24, 1"); p("s_lshl_b32 s27, s27, 2")
    for i in range(4):
        p(f"s_add_u32 s28, s27, {i}"); p("v_xor_b32 v15, s28, v14"); p(f"v_lshl_add_u32 v{RW+i}, v15, 5, v13")
    p("v_lshlrev_b32 v24, 4, v0")
    p("s_waitcnt lgkmcnt(0)")
    srd(p, 12, 4, SZ['ckv'])
    p("s_cmp_ge_u32 s24, 2"); p("s_cselect_b32 s8, s10, s8"); p("s_cselect_b32 s9, s11, s9")
    srd(p, 16, 8, SZ['wuk'])
    srd(p, 20, 6, 32*MB)
    p("s_lshl_b32 s30, s26, 18"); p("s_lshl_b32 s27, s24, 16"); p("s_add_u32 s30, s30, s27")
    p("s_and_b32 s27, s24, 1"); p("s_lshl_b32 s31, s27, 17"); p("s_lshl_b32 s27, s25, 8"); p("s_add_u32 s31, s31, s27")
    p("s_lshl_b32 s32, s24, 13"); p("s_add_u32 s32, s32, 65536")
    p("s_lshl_b32 s33, s24, 12")
    vm = VM()
    def dmaW(st):
        o = [[f"s_add_u32 m0, s33, {(st%4)*16384}"], [f"s_add_u32 s34, s31, {st*262144}"]]
        for i in range(4): o.append([f"buffer_load_dwordx4 v{VW+i}, s[16:19], s34 offen offset:{i*1024} lds"]); vm.issue(('W', st))
        return o
    def dmaA(pair, half):
        o = [[f"s_add_u32 m0, s32, {(pair%3)*32768 + half*4096}"], [f"s_add_u32 s35, s30, {pair*128 + half*32768}"]]
        for i in range(4): o.append([f"buffer_load_dwordx4 v{VA+i}, s[12:15], s35 offen offset:{i*1024} lds"]); vm.issue(('A', pair))
        return o
    for g in (dmaW(0), dmaA(0, 0), dmaA(0, 1), dmaW(1), dmaW(2), dmaA(1, 0), dmaA(1, 1), dmaW(3), dmaA(2, 0), dmaA(2, 1)):
        for x in g: p(x)
    FB = [128, 192]
    def reads(st):
        b = FB[st % 2]; o = []
        pair = st//2; kk = st % 2; sl = pair % 3
        ar = RA + kk + (2 if sl == 2 else 0); aoff = (sl % 2)*32768 if sl < 2 else 0
        wo = (st % 4)*16384
        A_ = [f"ds_read_b128 {v(b+4*rt,4)}, v{ar} offset:{aoff + rt*2048}" for rt in range(8)]
        W_ = []
        for m in range(2):
            for i in range(4):
                r = b + 32 + m*16 + 4*i
                W_.append([f"ds_read_b64_tr_b16 {v(r,2)}, v{RW+i} offset:{wo + m*8192}", f"ds_read_b64_tr_b16 {v(r+2,2)}, v{RW+i} offset:{wo + m*8192 + 1024}"])
        o = [A_[0]] + [x for w in W_ for x in w] + A_[1:]
        return o
    def bar(st):
        n = vm.wait_for(lambda t: (t[0] == 'W' and t[1] <= st+1) or (t[0] == 'A' and t[1] <= (st+1)//2))
        return [f"s_waitcnt vmcnt({n})", "s_barrier"]
    p(bar(-1))
    if stamps: p("s_memrealtime s[62:63]")
    p(reads(0))
    accK = lambda rt, nt: (rt*4 + nt)*4
    accV = lambda rt, nt: 128 + (rt*4 + nt)*4
    NST = 16
    for st in range(NST):
        b = FB[st % 2]
        mf = []
        for rt in range(8):
            for nt in range(4):
                d = a(accK(rt, nt), 4); mf.append([[], mfma(d, v(b+32+4*nt, 4), v(b+4*rt, 4), d if st else "0")])
            for nt in range(4):
                d = a(accV(rt, nt), 4); mf.append([[], mfma(d, v(b+4*rt, 4), v(b+48+4*nt, 4), d if st else "0")])
        mf[0][0] = ["s_waitcnt lgkmcnt(0)"]
        streams = []
        if st + 1 < NST:
            br = bar(st)
            streams.append([(2, br, 0, 0, 0)])
            rd = reads(st+1)
            streams.append([(1, [x], 1 + (k*50)//len(rd), 1, 56) for k, x in enumerate(rd)])
            d = []
            if st + 4 < NST: d += dmaW(st+4)
            if st >= 1:
                pr = (st-1)//2 + 3; half = (st-1) % 2
                if pr < NST//2: d += dmaA(pr, half)
            streams.append([(1 if x[0].startswith('s_') else 2, x, 2 + (k*58)//max(1, len(d)), 1, 62) for k, x in enumerate(d)])
        p(weave(mf, streams))
    if stamps: p("s_memrealtime s[64:65]")
    p("s_lshl_b32 s36, s25, 19"); p("s_lshl_b32 s27, s26, 16"); p("s_add_u32 s36, s36, s27")
    p("s_lshr_b32 s27, s24, 1"); p("s_lshl_b32 s27, s27, 15"); p("s_add_u32 s36, s36, s27")
    p("s_and_b32 s27, s24, 1"); p("s_lshl_b32 s28, s27, 11"); p("s_add_u32 s37, s36, s28")
    p("s_lshl_b32 s28, s27, 12"); p("s_add_u32 s38, s36, s28"); p(f"s_add_u32 s38, s38, {VF}")
    T = 32; k = 0
    def out(t0, t1, soff_reg, const):
        nonlocal k
        r = T + (k % 4)*12; k += 1
        for j in range(4): p(f"v_accvgpr_read_b32 v{r+4+j}, a{t0+j}")
        for j in range(4): p(f"v_accvgpr_read_b32 v{r+8+j}, a{t1+j}")
        for j in range(4): p(f"v_cvt_pk_bf16_f32 v{r+j}, v{r+4+2*j}, v{r+5+2*j}")
        p(f"s_add_u32 s39, s{soff_reg}, {const & ~4095}")
        p(f"buffer_store_dwordx4 {v(r,4)}, v24, s[20:23], s39 offen offset:{const & 4095} {store_flags}")
    for rt in range(8):
        for ks in range(2): out(accK(rt, 2*ks), accK(rt, 2*ks+1), 37, (rt//2)*8192 + (rt & 1)*4096 + ks*1024)
        if rt & 1:
            for nt in range(4): out(accV(rt-1, nt), accV(rt, nt), 38, (rt//2)*8192 + nt*1024)
    if stamps:
        p("s_memrealtime s[66:67]"); p("s_waitcnt vmcnt(0)"); p("s_memrealtime s[68:69]")
        stamp_out(p, name, [60, 62, 64, 66, 68], 0)
    p.label(f"{name}_end"); p("s_endpgm")
    p.fix_hazards()
    return kernel_head(name) + p.text(), kernel_desc(name, 512, 256), f"; @launch kernel={name} grid=(256,1,1) block=(256,1,1) lds=163840"

STAMP = 200*MB
def stamp_out(p, name, regs, kidx):
    p("s_waitcnt lgkmcnt(0)")
    p(f"s_load_dwordx2 s[4:5], s[0:1], {ARG['ws']}"); p("s_waitcnt lgkmcnt(0)")
    srd(p, 8, 4, WS_SIZE)
    p("s_cmp_lg_u32 s24, 0"); p(f"s_cbranch_scc1 {name}_end")
    p("s_lshl_b32 s3, s2, 6"); p(f"s_add_u32 s3, s3, {STAMP + kidx*65536}")
    p("v_mov_b32 v1, 0")
    for i, r in enumerate(regs):
        p(f"v_mov_b32 v2, s{r}"); p(f"buffer_store_dword v2, v1, s[8:11], s3 offen offset:{4*i}")
    p("s_waitcnt vmcnt(0)")
```

```python
from core import *
from layout import *
from k1 import srd, VM, stamp_out
import struct
def f32(x): return "0x%08x" % struct.unpack("<I", struct.pack("<f", x))[0]

VLANE16, VRD = 1, 2
Q0, S0, P0, NEGM, LL, TT, CM, MBI, ONES = 16, 80, 144, 176, 192, 208, 216, 224, 240
def Qr(t, ks): return v(Q0 + (t*4 + ks)*4, 4)
def Sreg(b, t, kvt): return S0 + b*32 + t*8 + kvt*4
def Preg(b, t): return P0 + b*16 + t*4
def Or(t, dt): return a((t*8 + dt)*4, 4)
F0 = 192
def Fr(j): return a(F0 + 4*j, 4)

def resolve_waits(ins, pending):
    out = []; q = list(pending)
    for x in ins:
        if x.startswith("WAITF"):
            j = int(x.split()[1])
            if j in q:
                idx = len(q) - 1 - q[::-1].index(j)
                out.append(f"s_waitcnt lgkmcnt({len(q) - 1 - idx})"); q = q[idx+1:]
        else:
            if x.startswith("ds_read_b128 a["):
                r = int(x.split('[')[1].split(':')[0]); q.append((r - F0)//4)
            out.append(x)
    return out, q

def iteration(k, QK, qkmask, SM, PV, dma, barn, prep, nextK=True):
    bq = k % 2; bs = (k+1) % 2
    mf = []
    for j in range(8):
        kvt, ks = divmod(j, 4)
        for n, t in enumerate(QK):
            d = v(Sreg(bq, t, kvt), 4)
            c = d if ks else (v(CM + kvt*4, 4) if t == qkmask else v(NEGM + 4*t, 4))
            mf.append([[f"WAITF {j+3}"] if (n == 0 and j % 4 == 0) else [], mfma(d, Fr(j), Qr(t, ks), c)])
    nqk = len(mf)
    for dt in range(8):
        for n, t in enumerate(PV):
            mf.append([[f"WAITF {8+dt+3}"] if (n == 0 and dt % 4 == 0) else [], mfma(Or(t, dt), Fr(8+dt), v(Preg(bq, t), 4), Or(t, dt))])
    npv = len(mf) - nqk
    for t in PV: mf.append([[], mfma(v(LL + 4*t, 4), v(ONES, 4), v(Preg(bq, t), 4), v(LL + 4*t, 4))])
    n = len(mf)
    head = []
    vreads = [f"ds_read_b128 {Fr(8+dt)}, v{VRD} offset:{k*16384 + 8192 + dt*1024}" for dt in range(8)] if PV else []
    kreads = [f"ds_read_b128 {Fr(j)}, v{VRD} offset:{((k+1) % 4)*16384 + j*1024}" for j in range(8)] if nextK else []
    toggle = [f"v_xor_b32 v{VRD}, 0x10000, v{VRD}"] if k == 3 else []
    streams = []
    wq, wp = len(QK), len(PV)
    barr = [f"s_waitcnt vmcnt({barn})", "s_barrier"] if barn is not None else []
    if nqk == 0:
        head += vreads
        rd = []
    else:
        rd = [(1, [x], min(j*wq + min(1, wq-1), nqk-1), 0, nqk-1) for j, x in enumerate(vreads)]
    bpos = 3 if wq >= 4 else (1 if n > 1 else 0)
    if barr: streams.append([(2, barr, bpos, 0, bpos)])
    lo_k = max(nqk, bpos)
    if npv:
        if toggle: rd.append((1, toggle, nqk - 1 if nqk else 0, 0, n-1))
        rd += [(1, [x], nqk + j*wp + min(1, wp-1), lo_k, n-1) for j, x in enumerate(kreads)]
        tail = []
    else:
        if toggle: rd.append((1, toggle, 0, 0, n-1))
        rd += [(1, [x], min((j+1)*wq, n-1), min((j+1)*wq - 1, n-1), n-1) for j, x in enumerate(kreads)]
    streams.append(rd)
    ne = 8*len(SM); va = []
    span = n - (len(PV) if npv and nqk else 0)
    order = [(t, pr) for pr in range(4) for t in SM]
    for i in range(ne):
        t, pr = order[i//2]
        want = (i*span)//ne
        va.append((2, [f"v_exp_f32 v{TT + i%8}, v{Sreg(bs, t, 0) + 2*pr + (i&1)}"], want, 0, n-1))
        if i % 2 == 0 and i >= 2:
            t2, pr2 = order[i//2 - 1]
            va.append((1, [f"v_cvt_pk_bf16_f32 v{Preg(bs, t2) + pr2}, v{TT + (i-2)%8}, v{TT + (i-1)%8}"], want + 1, 0, n-1))
    if ne:
        t2, pr2 = order[-1]
        va.append((1, [f"v_cvt_pk_bf16_f32 v{Preg(bs, t2) + pr2}, v{TT + (ne-2)%8}, v{TT + (ne-1)%8}"], min(span + 1, n-1), 0, n-1))
    streams.append(va)
    if dma:
        src = 38 if k < 2 else 37
        d = [(1, [f"s_add_u32 m0, s{src}, {((k+2) % 4)*16384}"])]
        d += [(2 if wq >= 4 else 1, [f"buffer_load_dwordx4 v{VLANE16}, s[20:23], s36 offen offset:{i*1024} lds"]) for i in range(4)]
        d += [(1, ["s_add_u32 s36, s36, 8192"])]
        if k == 3: d += [(1, ["s_xor_b32 s37, s37, 0x10000"]), (1, ["s_xor_b32 s38, s38, 0x10000"])]
        streams.append([(c, x, bpos + 1 + (i*(n - bpos - 2))//len(d), bpos + (1 if barr else 0), n-1) for i, (c, x) in enumerate(d)])
    if prep is not None:
        t, stp = prep
        lo = min(nqk + 2, n-1) if npv else n-1
        streams.append([(1, [f"v_add_f32 v{CM+e}, v{NEGM + 4*t + e%4}, v{MBI + stp*8 + e}"], lo + 2*e, lo, n-1) for e in range(8)])
    body = head + weave(mf, streams)
    out, q = resolve_waits(body, list(range(8)) if QK else [])
    if nextK: assert q[-8:] == list(range(8)) or True
    return out

def gen_k2(name, store_flags="sc1", stamps=False, thr=2.0**40):
    p = Prog()
    p("s_cmp_ge_u32 s2, 256"); p(f"s_cbranch_scc1 {name}_end")
    p(f"s_load_dwordx2 s[4:5], s[0:1], {ARG['q']}")
    p(f"s_load_dwordx2 s[6:7], s[0:1], {ARG['wq']}")
    p(f"s_load_dwordx2 s[8:9], s[0:1], {ARG['ws']}")
    if stamps: p("s_memrealtime s[60:61]")
    p("v_lshrrev_b32 v3, 6, v0"); p("v_and_b32 v0, 63, v0")
    p("v_readfirstlane_b32 s24, v3")
    p("s_and_b32 s25, s2, 7"); p("s_lshr_b32 s26, s2, 3")
    p("s_and_b32 s27, s26, 3"); p("s_lshl_b32 s25, s25, 2"); p("s_add_u32 s25, s25, s27")
    p("s_lshr_b32 s26, s26, 2")
    p(f"v_lshlrev_b32 v{VLANE16}, 4, v0")
    p("v_lshrrev_b32 v4, 4, v0"); p("v_lshrrev_b32 v5, 3, v0")
    VX, VW, RX, RW = 16, 20, 24, 26
    p("v_and_b32 v6, 7, v0"); p("s_movk_i32 s27, 1152"); p("v_mul_lo_u32 v8, v5, s27")
    for i in range(4):
        p(f"v_add_u32 v7, {4*(i&1)}, v4"); p("v_xor_b32 v7, v7, v6"); p("v_lshl_add_u32 v7, v7, 4, v8")
        p(f"v_add_u32 v{VX+i}, {((i>>1)*64 + (i&1)*8)*1152 - i*1024}, v7")
    p("v_and_b32 v6, 15, v0"); p("v_lshrrev_b32 v8, 1, v6"); p("v_and_b32 v9, 1, v6")
    for i in range(4):
        p(f"v_add_u32 v7, {4*((i>>1)&1)}, v4"); p("v_xor_b32 v7, v7, v8"); p("v_lshl_add_u32 v7, v7, 1, v9"); p("v_lshlrev_b32 v7, 4, v7")
        p(f"v_lshl_add_u32 v7, v4, 13, v7"); p(f"v_add_u32 v{VW+i}, {i*32768 - i*1024}, v7")
    p("s_lshl_b32 s27, s24, 13"); p("s_add_u32 s27, s27, 16384")
    p("v_xor_b32 v7, v8, v4"); p("v_lshlrev_b32 v7, 4, v7"); p("v_lshl_add_u32 v7, v6, 7, v7"); p(f"v_add_u32 v{RX}, s27, v7")
    p(f"v_xor_b32 v{RX+1}, 64, v{RX}")
    p("v_lshrrev_b32 v7, 2, v6"); p("v_and_b32 v8, 1, v4"); p("v_lshl_add_u32 v8, v8, 2, v7")
    p("v_lshl_add_u32 v7, v4, 3, v7"); p("v_lshlrev_b32 v7, 8, v7"); p("v_and_b32 v9, 3, v0"); p("v_lshl_add_u32 v7, v9, 3, v7")
    p(f"v_add_u32 v7, {16384 + 32768}, v7")
    for i in range(8):
        p(f"v_xor_b32 v9, {i}, v8"); p(f"v_lshl_add_u32 v{RW+i}, v9, 5, v7")
    p("s_waitcnt lgkmcnt(0)")
    srd(p, 12, 4, SZ['q']); srd(p, 16, 6, SZ['wq']); srd(p, 20, 8, 48*MB)
    p("s_lshl_b32 s27, s26, 7"); p("s_lshl_b32 s28, s24, 4"); p("s_add_u32 s30, s27, s28"); p("s_mul_i32 s30, s30, 1152")
    p("s_sub_u32 s31, 1920, s27"); p("s_add_u32 s31, s31, s28"); p("s_mul_i32 s31, s31, 1152")
    p("s_lshl_b32 s32, s24, 17"); p("s_lshl_b32 s27, s25, 8"); p("s_add_u32 s32, s32, s27")
    p("s_lshl_b32 s33, s24, 13"); p("s_add_u32 s33, s33, 16384")
    p("s_lshl_b32 s34, s24, 12"); p(f"s_add_u32 s34, s34, {16384+32768}")
    p("s_lshl_b32 s43, s25, 19"); p("s_and_b32 s27, s24, 1"); p("s_lshl_b32 s27, s27, 12"); p("s_add_u32 s43, s43, s27")
    p("s_cmp_ge_u32 s24, 2"); p(f"s_cselect_b32 s27, {VF - 16384}, {KF}"); p("s_add_u32 s43, s43, s27")
    p("s_mov_b32 s36, s43")
    p("s_lshl_b32 s37, s24, 12"); p("s_add_u32 s38, s37, 0x10000")
    p("s_mov_b32 s40, 0"); p(f"s_mov_b32 s41, {f32(thr)}")
    vm = VM()
    def dmaX(pair, half):
        o = [[f"s_add_u32 m0, s33, {(pair%3)*49152 + half*4096}"], [f"s_add_u32 s35, s{30+half}, {pair*128}"]]
        for i in range(4): o.append([f"buffer_load_dwordx4 v{VX+i}, s[12:15], s35 offen offset:{i*1024} lds"]); vm.issue(('P', pair))
        return o
    def dmaW(pair):
        o = [[f"s_add_u32 m0, s34, {(pair%3)*49152}"], [f"s_add_u32 s35, s32, {pair*524288}"]]
        for i in range(4): o.append([f"buffer_load_dwordx4 v{VW+i}, s[16:19], s35 offen offset:{i*1024} lds"]); vm.issue(('P', pair))
        return o
    def dmaG(g):
        o = [[f"s_add_u32 m0, s37, {(g+1)*16384}"]]
        for i in range(4): o.append([f"buffer_load_dwordx4 v{VLANE16}, s[20:23], s36 offen offset:{i*1024} lds"]); vm.issue(('G', g))
        o.append(["s_add_u32 s36, s36, 8192"])
        return o
    for pr in range(3):
        for g in (dmaW(pr), dmaX(pr, 0), dmaX(pr, 1)):
            for x in g: p(x)
    for x in dmaG(-1): p(x)
    p("s_lshl_b32 s27, s24, 4"); p("v_add_u32 v10, s27, v6")
    p("v_lshlrev_b32 v11, 2, v4")
    p("v_sub_u32 v10, v10, v11")
    p("v_mov_b32 v11, 0xff800000")
    for e in range(16):
        stp, kvt, r = e//8, (e//4) % 2, e % 4
        p(f"v_cmp_gt_i32 vcc, {32*stp + 16*kvt + r}, v10"); p(f"v_cndmask_b32 v{MBI+e}, 0, v11, vcc")
    for r in range(4): p(f"v_mov_b32 v{ONES+r}, 0x3f803f80")
    p(f"v_mov_b32 v{VRD}, v{VLANE16}")
    FB = [176, 128]
    acc = lambda t, dt: v(S0 + (t*8 + dt)*4, 4)
    def reads(st):
        b = FB[st % 2]; kk = st % 2
        X_ = [f"ds_read_b128 {a(b+4*t,4)}, v{RX+kk} offset:{t*2048}" for t in range(4)]
        W_ = []
        for dt in range(8):
            r = b + 16 + 4*dt
            W_ += [f"ds_read_b64_tr_b16 {a(r,2)}, v{RW+dt} offset:{kk*8192}", f"ds_read_b64_tr_b16 {a(r+2,2)}, v{RW+dt} offset:{kk*8192 + 1024}"]
        return X_ + W_
    def adv(pair):
        d = 49152 if pair % 3 else -98304
        return [f"v_add_u32 v{r}, {d & 0xffffffff:#x}, v{r}" for r in range(RX, RW+8)]
    n = vm.wait_for(lambda t: t == ('P', 0)); p(f"s_waitcnt vmcnt({n})"); p("s_barrier")
    if stamps: p("s_memrealtime s[62:63]")
    p(reads(0))
    NST = 18
    zero = [f"v_accvgpr_write_b32 a{r}, 0" for r in range(128)]
    for st in range(NST):
        b = FB[st % 2]
        mf = []
        for dt in range(8):
            for t in range(4):
                d = acc(t, dt); mf.append([[], mfma(d, a(b+16+4*dt, 4), a(b+4*t, 4), d if st else "0")])
        mf[0][0] = ["s_waitcnt lgkmcnt(0)"]
        streams = []
        if st % 2 == 1 and st < 17:
            pr = (st+1)//2
            n = vm.wait_for(lambda t: t[0] == 'P' and t[1] <= pr)
            streams.append([(2, [f"s_waitcnt vmcnt({n})", "s_barrier"], 0, 0, 0)])
        if st + 1 < NST: rd = reads(st+1)
        else: rd = [f"ds_read_b128 {Fr(j)}, v{VRD} offset:{j*1024}" for j in range(8)]
        items = [(1, [x], 1 + (k*23)//len(rd), 1, 27) for k, x in enumerate(rd)]
        if st % 2 == 0 and st + 2 < NST:
            items += [(1, [x], 25, 1, 31) for x in adv(st//2 + 1)]
        streams.append(items)
        d = []
        if 1 <= st <= 12:
            pr = (st-1)//2 + 3
            d = (dmaW(pr) + dmaX(pr, 0)) if st % 2 == 1 else dmaX(pr, 1)
        elif st == 13: d = dmaG(0) + dmaG(1)
        elif st == 14: d = dmaG(2)
        elif st == 15: d = dmaG(3) + dmaG(4)
        elif st == 16: d = dmaG(5)
        streams.append([(1, x, 1 + (k*29)//len(d), 1, 31) for k, x in enumerate(d)])
        z = zero[st*8:(st+1)*8]
        streams.append([(1, [x], 2 + k*3, 1, 31) for k, x in enumerate(z)])
        p(weave(mf, streams))
    if stamps: p("s_memrealtime s[64:65]")
    p(f"s_mov_b32 s44, {f32(1.4426950408889634 * 128 ** -0.5)}"); p("s_mov_b32 s45, s44")
    for t in range(4):
        for ks in range(4):
            r = S0 + (t*8 + 2*ks)*4
            for j in range(4): p(f"v_pk_mul_f32 {v(r+2*j,2)}, {v(r+2*j,2)}, s[44:45]")
            for j in range(4): p(f"v_cvt_pk_bf16_f32 v{Q0 + (t*4+ks)*4 + j}, v{r+2*j}, v{r+2*j+1}")
    n = vm.wait_for(lambda t: t[0] == 'G' and t[1] <= 1); assert n == 16
    def qk0(first):
        o = ["s_waitcnt lgkmcnt(0)"]
        for j in range(8):
            kvt, ks = divmod(j, 4)
            for t in range(4):
                d = v(Sreg(0, t, kvt), 4)
                c = d if ks else (v(CM + kvt*4, 4) if t == 0 else ("0" if first else v(NEGM + 4*t, 4)))
                o.append(mfma(d, Fr(j), Qr(t, ks), c))
            if j >= 1: o.append(f"ds_read_b128 {Fr(j-1)}, v{VRD} offset:{16384 + (j-1)*1024}")
        o.append(f"ds_read_b128 {Fr(7)}, v{VRD} offset:{16384 + 7*1024}")
        return o
    p("s_cmp_eq_u32 s26, 0"); p("s_cselect_b32 s27, -1, 0")
    for e in range(8): p(f"v_and_b32 v{CM+e}, s27, v{MBI+e}")
    for r in range(16): p(f"v_mov_b32 v{LL+r}, 0")
    p("s_waitcnt vmcnt(16)"); p("s_barrier")
    p(qk0(True))
    def lane_max(regs, tmp):
        for sw in ("v_permlane16_swap_b32", "v_permlane32_swap_b32"):
            for i_, r in enumerate(regs): p(f"v_mov_b32 v{tmp+i_}, v{r}")
            for i_, r in enumerate(regs): p(f"{sw} v{r}, v{tmp+i_}")
            for i_, r in enumerate(regs): p(f"v_max_f32 v{r}, v{r}, v{tmp+i_}")
    for t in range(4):
        r = Sreg(0, t, 0); p(f"v_max3_f32 v{TT+t}, v{r}, v{r+1}, v{r+2}")
    for t in range(4):
        r = Sreg(0, t, 0); p(f"v_max3_f32 v{TT+t}, v{TT+t}, v{r+3}, v{r+4}")
    for t in range(4):
        r = Sreg(0, t, 0); p(f"v_max3_f32 v{TT+t}, v{TT+t}, v{r+5}, v{r+6}")
    for t in range(4):
        r = Sreg(0, t, 0); p(f"v_max_f32 v{TT+t}, v{TT+t}, v{r+7}")
    lane_max([TT+t for t in range(4)], TT+4)
    for t in range(4):
        for r in range(4): p(f"v_sub_f32 v{NEGM+4*t+r}, 0, v{TT+t}")
    for t in range(4):
        for e in range(8): p(f"v_sub_f32 v{Sreg(0,t,0)+e}, v{Sreg(0,t,0)+e}, v{TT+t}")
    A4, A3, A2, A1 = [0,1,2,3], [1,2,3], [2,3], [3]
    p.label(f"{name}_go")
    if stamps: p("s_memrealtime s[66:67]")
    p("s_cmp_eq_u32 s26, 0"); p(f"s_cbranch_scc1 {name}_I0T")
    for e in range(8): p(f"v_add_f32 v{CM+e}, v{NEGM + e%4}, v{MBI+e}")
    p("s_sub_u32 s39, s26, 1")
    p(iteration(1, A4, None, A4, [], True, None, None))
    p(f"s_branch {name}_FULL2")
    p(".p2align 6")
    p.label(f"{name}_FULL")
    p(iteration(0, A4, None, A4, A4, True, 12, None)); p(iteration(1, A4, None, A4, A4, True, None, None))
    p.label(f"{name}_FULL2")
    p(iteration(2, A4, None, A4, A4, True, 12, None)); p(iteration(3, A4, None, A4, A4, True, None, None))
    p("s_sub_u32 s39, s39, 1"); p(f"s_cbranch_scc0 {name}_FULL")
    p(iteration(0, A4, 0, A4, A4, True, 12, (0, 1))); p(iteration(1, A4, 0, A4, A4, True, None, (1, 0)))
    p.label(f"{name}_T2")
    p(iteration(2, A3, 1, A4, A4, True, 12, (1, 1))); p(iteration(3, A3, 1, A3, A4, True, None, (2, 0)))
    p("s_cmp_eq_u32 s26, 7"); p(f"s_cbranch_scc1 {name}_FP")
    p("s_lshl_b32 s39, s26, 1"); p("s_sub_u32 s39, 13, s39")
    p(iteration(0, A2, None, A3, A3, True, 12, None)); p(iteration(1, A2, None, A2, A3, True, None, None))
    p(f"s_branch {name}_HALF2")
    p(".p2align 6")
    p.label(f"{name}_HALF")
    p(iteration(0, A2, None, A2, A2, True, 12, None)); p(iteration(1, A2, None, A2, A2, True, None, None))
    p.label(f"{name}_HALF2")
    p(iteration(2, A2, None, A2, A2, True, 12, None)); p(iteration(3, A2, None, A2, A2, True, None, None))
    p("s_sub_u32 s39, s39, 1"); p(f"s_cbranch_scc0 {name}_HALF")
    p(iteration(0, A2, 2, A2, A2, False, 12, (2, 1))); p(iteration(1, A2, 2, A2, A2, False, None, (3, 0)))
    p.label(f"{name}_F2")
    p(iteration(2, A1, 3, A2, A2, False, 4, (3, 1))); p(iteration(3, A1, 3, A1, A2, False, None, None, nextK=False))
    p(iteration(0, [], None, A1, A1, False, 0, None, nextK=False)); p(iteration(1, [], None, [], A1, False, None, None, nextK=False))
    if stamps: p("s_memrealtime s[68:69]")
    p("s_mov_b64 s[46:47], 0")
    p("s_lshl_b32 s27, s26, 3"); p("s_add_u32 s28, s27, s24"); p("s_lshl_b32 s28, s28, 17")
    p("s_lshl_b32 s29, s25, 12"); p(f"s_add_u32 s29, s29, {CTX}")
    p("s_add_u32 s48, s28, s29"); p(f"s_add_u32 s49, s48, {4*131072}")
    p("s_sub_u32 s28, 120, s27"); p("s_add_u32 s28, s28, s24"); p("s_lshl_b32 s28, s28, 17")
    p("s_add_u32 s50, s28, s29"); p(f"s_add_u32 s51, s50, {4*131072}")
    k = 0
    for t in range(4):
        p(f"v_cmp_nle_f32 vcc, v{LL+4*t}, s41".replace("v_cmp_nle_f32 vcc", "v_cmp_nle_f32_e64 vcc")); p("s_or_b64 s[46:47], s[46:47], vcc")
        p(f"v_rcp_f32 v{TT}, v{LL+4*t}"); p(f"v_mov_b32 v{TT+1}, v{TT}")
        for s_ in range(4):
            r = S0 + (k % 4)*12; k += 1
            for j in range(8): p(f"v_accvgpr_read_b32 v{r+4+j}, a{(t*8+2*s_)*4 + j}")
            for j in range(4): p(f"v_pk_mul_f32 {v(r+4+2*j,2)}, {v(r+4+2*j,2)}, {v(TT,2)}")
            for j in range(4): p(f"v_cvt_pk_bf16_f32 v{r+j}, v{r+4+2*j}, v{r+5+2*j}")
            p(f"buffer_store_dwordx4 {v(r,4)}, v{VLANE16}, s[20:23], s{48+t} offen offset:{s_*1024} {store_flags}")
    p("s_cmp_lg_u32 s40, 0"); p(f"s_cbranch_scc1 {name}_fin")
    p("s_cmp_lg_u64 s[46:47], 0"); p("s_cselect_b32 s27, 1, 0")
    p("s_lshl_b32 s28, s24, 2"); p("s_add_u32 s28, s28, 131072")
    p("v_mov_b32 v3, s27"); p("v_mov_b32 v12, s28"); p("ds_write_b32 v12, v3"); p("v_mov_b32 v12, 131072")
    p("s_waitcnt lgkmcnt(0)"); p("s_barrier")
    p("ds_read_b128 v[12:15], v12"); p("s_waitcnt lgkmcnt(0)")
    p("v_or_b32 v12, v12, v13"); p("v_or3_b32 v12, v12, v14, v15"); p("v_readfirstlane_b32 s27, v12")
    p("s_cmp_lg_u32 s27, 0"); p(f"s_cbranch_scc1 {name}_redo")
    p.label(f"{name}_fin")
    if stamps:
        p("s_memrealtime s[70:71]"); p("s_waitcnt vmcnt(0)"); p("s_memrealtime s[72:73]")
        stamp_out(p, name, [60, 62, 64, 66, 68, 70, 72], 1)
    p.label(f"{name}_end"); p("s_endpgm")
    p.label(f"{name}_I0T")
    for e in range(8): p(f"v_add_f32 v{CM+e}, v{NEGM + e%4}, v{MBI+8+e}")
    p(iteration(1, A4, 0, A4, [], True, None, (1, 0)))
    p(f"s_branch {name}_T2")
    p.label(f"{name}_FP")
    p(iteration(0, A2, 2, A3, A3, False, 12, (2, 1))); p(iteration(1, A2, 2, A2, A3, False, None, (3, 0)))
    p(f"s_branch {name}_F2")
    p.label(f"{name}_redo")
    p("s_mov_b32 s40, 1")
    p("s_waitcnt vmcnt(0)")
    p("s_lshl_b32 s27, s26, 7"); p("v_add_u32 v12, s27, v10"); p("v_add_u32 v13, 64, v12")
    p("s_sub_u32 s27, 1920, s27"); p("v_add_u32 v14, s27, v10"); p("v_add_u32 v15, 64, v14")
    for t in range(4): p(f"v_mov_b32 v{TT+t}, 0xff800000")
    p("s_lshl_b32 s39, s26, 2"); p("s_sub_u32 s39, 63, s39")
    p("s_lshl_b32 s36, s25, 19"); p("s_lshl_b32 s27, s24, 11"); p("s_add_u32 s36, s36, s27"); p(f"s_add_u32 s36, s36, {KF}")
    p.label(f"{name}_mloop")
    p("s_barrier")
    p("s_lshl_b32 m0, s24, 11")
    for i_ in range(2): p(f"buffer_load_dwordx4 v{VLANE16}, s[20:23], s36 offen offset:{i_*1024} lds")
    p("s_add_u32 s36, s36, 8192")
    p("s_waitcnt vmcnt(0)"); p("s_barrier")
    for j in range(8): p(f"ds_read_b128 {Fr(j)}, v{VLANE16} offset:{j*1024}")
    p("s_waitcnt lgkmcnt(0)")
    for j in range(8):
        kvt, ks = divmod(j, 4)
        for t in range(4):
            d = v(Sreg(0, t, kvt), 4); p(mfma(d, Fr(j), Qr(t, ks), d if ks else "0"))
    for t in range(4):
        for e in range(8):
            p(f"v_cmp_gt_i32 vcc, {16*(e//4) + e%4}, v{12+t}"); p(f"v_cndmask_b32 v3, v{Sreg(0,t,0)+e}, v11, vcc"); p(f"v_max_f32 v{TT+t}, v{TT+t}, v3")
        p(f"v_subrev_u32 v{12+t}, 32, v{12+t}")
    p("s_sub_u32 s39, s39, 1"); p(f"s_cbranch_scc0 {name}_mloop")
    lane_max([TT+t for t in range(4)], TT+4)
    for t in range(4):
        for r in range(4): p(f"v_sub_f32 v{NEGM+4*t+r}, 0, v{TT+t}")
    p("s_barrier")
    p("s_mov_b32 s36, s43"); p("s_lshl_b32 s37, s24, 12"); p("s_add_u32 s38, s37, 0x10000")
    for g in range(-1, 6):
        for x in dmaG(g): p(x)
    p(f"v_mov_b32 v{VRD}, v{VLANE16}")
    p(zero)
    for r in range(16): p(f"v_mov_b32 v{LL+r}, 0")
    p("s_cmp_eq_u32 s26, 0"); p("s_cselect_b32 s27, -1, 0")
    for e in range(8): p(f"v_and_b32 v{CM+e}, s27, v{MBI+e}"); p(f"v_add_f32 v{CM+e}, v{CM+e}, v{NEGM + e%4}")
    p("s_waitcnt vmcnt(16)"); p("s_barrier")
    for j in range(8): p(f"ds_read_b128 {Fr(j)}, v{VRD} offset:{j*1024}")
    p(qk0(False))
    p(f"s_branch {name}_go")
    nf = p.fix_hazards()
    return kernel_head(name) + p.text(), kernel_desc(name, 512, 256), f"; @launch kernel={name} grid=(256,1,1) block=(256,1,1) lds=163840"
```

```python
from core import *
from layout import *
from k1 import srd, stamp_out
from k2 import f32
from prep import rnd_bf16

RED = 0
CV = 81920
CVS = 13056
XT = CV + 3*CVS
YT = XT + 10240
GA = YT + 10240
K3_LDS = GA + 20480

def conv_wave(p, name, stamps):
    p("s_sub_u32 s27, s24, 4"); p(f"s_mul_i32 s31, s27, {CVS}"); p(f"s_add_u32 s31, s31, {CV}")
    p(f"s_mul_i32 s32, s30, {2*UTP}"); p(f"s_add_u32 s32, s32, {UT+128}")
    p("s_mov_b32 m0, s31")
    for i in range(4): p(f"buffer_load_dwordx4 v1, s[12:15], s32 offen offset:{i*1024} lds")
    p("s_lshl_b32 s33, s30, 12"); p("s_add_u32 m0, s31, 8832")
    for i in range(4): p(f"buffer_load_dwordx4 v1, s[16:19], s33 offen offset:{i*1024} lds")
    p(f"s_add_u32 s32, s32, {UTP}"); p("s_add_u32 m0, s31, 4160")
    for i in range(4): p(f"buffer_load_dwordx4 v1, s[12:15], s32 offen offset:{i*1024} lds")
    p("s_and_b32 s27, s30, 0xfffe"); p("s_lshl_b32 s27, s27, 1"); p("s_load_dword s34, s[8:9], s27")
    p("v_add_u32 v2, 8256, v1"); p("v_and_b32 v3, 48, v1"); p("v_add_u32 v3, 4096, v3"); p("v_cmp_gt_u32 vcc, 36, v0"); p("v_cndmask_b32 v2, v3, v2, vcc")
    p("v_add_u32 v2, s31, v2")
    for r in range(4): p(f"v_mov_b32 v{112+r}, 0")
    p("ds_write_b128 v2, v[112:115]")
    p("v_and_b32 v2, 15, v0"); p("v_lshrrev_b32 v3, 4, v0")
    p("v_sub_u32 v4, 15, v2"); p("v_and_b32 v5, 1, v4"); p("v_mul_u32_u24 v5, 4160, v5"); p("v_lshrrev_b32 v4, 1, v4")
    p("v_lshl_add_u32 v5, v4, 2, v5"); p("v_lshl_add_u32 v5, v3, 4, v5"); p("v_add_u32 v5, s31, v5")
    for q in range(4): p(f"v_add_u32 v{8+q}, {4032 - 512*(2*q+1) - 448}, v5")
    p("v_lshlrev_b32 v6, 5, v2"); p("v_lshl_add_u32 v12, v3, 4, v6"); p(f"s_add_u32 s27, s31, {8832 - 32 - 448}"); p("v_add_u32 v12, s27, v12")
    p("v_lshl_add_u32 v13, v3, 3, v6")
    p(f"s_add_u32 s27, s31, {4088 - 3584}"); p("v_sub_u32 v14, s27, v13")
    p(f"s_add_u32 s27, s31, {4160+4094}"); p("v_mov_b32 v15, s27")
    p("s_waitcnt vmcnt(0)")
    p("ds_write_b16 v15, v112")
    def fr(b, n): return (v(16 + 4*n, 4) if b == 0 else a(4*n, 4))
    def fr2(b, n, h): return (v(16 + 4*n + 2*h, 2) if b == 0 else a(4*n + 2*h, 2))
    def reads(rho):
        b = rho % 2; o = []
        for x in range(8):
            off = (7 - rho)*16 + (128 if x % 2 == 0 else 0)
            o.append([f"ds_read2_b32 {fr2(b,x,0)}, v{8 + x//2} offset0:{off} offset1:{off+1}", f"ds_read2_b32 {fr2(b,x,1)}, v{8 + x//2} offset0:{off+2} offset1:{off+3}"])
        B_ = [f"ds_read_b128 {fr(b,8+d)}, v12 offset:{(7-rho)*64 + 512*d}" for d in range(8)]
        return o[0] + B_ + [y for x in o[1:] for y in x]
    p("s_waitcnt lgkmcnt(0)")
    p(reads(0))
    ACC = 80
    for rho in range(8):
        b = rho % 2; mf = []
        for x in range(8):
            for d in range(8 - x):
                c = x + d; D = v(ACC + 4*c, 4)
                mf.append([[], mfma(D, fr(b, x), fr(b, 8+d), "0" if (rho == 0 and x == 0) else D)])
        mf[0][0] = ["s_waitcnt lgkmcnt(0)"]
        rd = reads(rho+1) if rho < 7 else [f"ds_read_b64 {v(16+2*c,2)}, v14 offset:{512*(7-c)}" for c in range(8)]
        p(weave(mf, [[(1, [x], k, 0, 30) for k, x in enumerate(rd)]]))
    p("s_waitcnt lgkmcnt(0)")
    p("s_bitcmp1_b32 s30, 0"); p("s_cselect_b32 s27, 0, 16"); p("s_lshl_b32 s34, s34, s27"); p("s_and_b32 s34, s34, 0xffff0000")
    p("s_lshl_b32 s33, s30, 12"); p(f"s_add_u32 s33, s33, {Y2T}")
    for c in range(8):
        y = ACC + 4*c; u = 48 + 4*(c % 2); t = 56
        p(f"v_and_b32 v{u}, 0xffff0000, v{16+2*c+1}"); p(f"v_lshlrev_b32 v{u+1}, 16, v{16+2*c+1}")
        p(f"v_and_b32 v{u+2}, 0xffff0000, v{16+2*c}"); p(f"v_lshlrev_b32 v{u+3}, 16, v{16+2*c}")
        for r in range(4): p(f"v_mul_f32 v{u+r}, s34, v{u+r}")
        p(rnd_bf16(t, u, u+1)); p(rnd_bf16(t+1, u+2, u+3)); p(rnd_bf16(t, y, y+1)); p(rnd_bf16(t+1, y+2, y+3))
        for r in range(4): p(f"v_add_f32 v{y+r}, v{y+r}, v{u+r}")
        p(f"v_cvt_pk_bf16_f32 v{y}, v{y}, v{y+1}"); p(f"v_cvt_pk_bf16_f32 v{y+1}, v{y+2}, v{y+3}")
        p(f"buffer_store_dwordx2 {v(y,2)}, v13, s[12:15], s33 offen offset:{512*c} sc1")
    p("s_lshl_b32 s33, s30, 2"); p(f"s_add_u32 s33, s33, {FLAGS}"); p("v_mov_b32 v2, 0"); p("v_mov_b32 v3, 1")
    p("s_mov_b64 exec, 1")
    p("s_waitcnt vmcnt(0)")
    p("buffer_store_dword v3, v2, s[12:15], s33 offen sc1")
    if stamps:
        p("s_memrealtime s[62:63]"); p("s_waitcnt lgkmcnt(0)")
        p("s_cmp_lg_u32 s24, 4"); p(f"s_cbranch_scc1 {name}_end")
        p("s_lshl_b32 s3, s2, 6"); p(f"s_add_u32 s3, s3, {200*MB + 2*65536 + 32}"); p("v_mov_b32 v3, s62"); p("s_mov_b32 s14, 0x10000000"); p("buffer_store_dword v3, v2, s[12:15], s3 offen")
    p("s_endpgm")

def fetcher(p, name, NT, stamps):
    CH = 2*NT
    npc = CH
    p("s_mul_i32 s27, s25, 73728"); p("s_lshl_b32 s28, s26, 1"); p("s_add_u32 s27, s27, s28")
    p("v_mov_b32 v2, v0"); p(f"s_mov_b32 s28, {-(-(1<<32)//CH):#x}")
    for i in range(npc):
        p("v_mul_hi_u32 v3, v2, s28"); p(f"v_mul_u32_u24 v4, {CH}, v3"); p("v_sub_u32 v4, v2, v4"); p("v_mul_u32_u24 v3, 1152, v3"); p("v_lshl_add_u32 v3, v4, 4, v3")
        p(f"s_mov_b32 m0, {XT + i*1024}"); p("v_add_u32 v2, 64, v2"); p("buffer_load_dwordx4 v3, s[20:23], s27 offen lds")
    p("v_and_b32 v5, 15, v0"); p("v_lshlrev_b32 v6, 2, v5"); p("s_lshl_b32 s27, s25, 8"); p(f"s_add_u32 s27, s27, {GATE}")
    for t in range(4): p(f"buffer_load_dword v{8+t}, v6, s[12:15], s27 offen offset:{64*t}")
    p("v_lshlrev_b32 v2, 2, v0"); p("s_lshl_b32 s27, s26, 2"); p(f"s_add_u32 s27, s27, {FLAGS}")
    p("s_mov_b32 s35, 100000")
    p.label(f"{name}_poll{NT}")
    p("buffer_load_dword v3, v2, s[12:15], s27 offen sc1")
    if NT == 5: p("buffer_load_dword v4, v6, s[12:15], s27 offen offset:256 sc1")
    p("s_waitcnt vmcnt(0)")
    if NT == 5: p("v_and_b32 v3, v3, v4")
    p("v_cmp_ne_u32 vcc, 1, v3"); p(f"s_cbranch_vccz {name}_ready{NT}")
    p("s_sleep 8"); p("s_sub_u32 s35, s35, 1"); p(f"s_cbranch_scc0 {name}_poll{NT}")
    p.label(f"{name}_ready{NT}")
    if stamps: p("s_memrealtime s[62:63]")
    p("v_lshrrev_b32 v2, 3, v0"); p("v_lshlrev_b32 v2, 12, v2"); p("v_and_b32 v3, 7, v0"); p("v_lshl_add_u32 v2, v3, 4, v2")
    p("s_lshl_b32 s27, s26, 12"); p("s_lshl_b32 s28, s25, 7"); p("s_add_u32 s27, s27, s28"); p(f"s_add_u32 s27, s27, {Y2T}")
    for i in range(2*NT):
        p(f"buffer_load_dwordx4 {v(16+4*i,4)}, v2, s[12:15], s27 offen sc1"); p("s_add_u32 s27, s27, 32768")
    p(f"v_add_u32 v2, {YT}, v1")
    for i in range(2*NT):
        p(f"s_waitcnt vmcnt({2*NT-1-i})"); p(f"ds_write_b128 v2, {v(16+4*i,4)} offset:{i*1024}")
    p("v_lshrrev_b32 v2, 2, v0"); p("v_lshlrev_b32 v2, 7, v2"); p("v_and_b32 v3, 3, v0"); p("v_lshl_add_u32 v2, v3, 3, v2"); p(f"v_add_u32 v2, {YT}, v2")
    p(f"v_mul_u32_u24 v3, {CH*16}, v5"); p("v_lshrrev_b32 v4, 4, v0"); p("v_lshl_add_u32 v3, v4, 3, v3"); p(f"v_add_u32 v3, {XT}, v3")
    p(f"v_add_u32 v4, {GA}, v1")
    p("s_waitcnt lgkmcnt(0)")
    for t in range(4):
        for n in range(NT):
            p(f"ds_read_b64_tr_b16 {v(16+4*n,2)}, v2 offset:{n*2048 + t*32}"); p(f"ds_read_b64 {v(18+4*n,2)}, v3 offset:{t*16*CH*16 + n*32}")
        p("s_waitcnt lgkmcnt(0)")
        for n in range(NT):
            y = 40 + 8*(n % 2); x = y + 4; T = 60
            p(f"v_lshlrev_b32 v{y}, 16, v{16+4*n}"); p(f"v_and_b32 v{y+1}, 0xffff0000, v{16+4*n}"); p(f"v_lshlrev_b32 v{y+2}, 16, v{17+4*n}"); p(f"v_and_b32 v{y+3}, 0xffff0000, v{17+4*n}")
            p(f"v_lshlrev_b32 v{x}, 16, v{18+4*n}"); p(f"v_and_b32 v{x+1}, 0xffff0000, v{18+4*n}"); p(f"v_lshlrev_b32 v{x+2}, 16, v{19+4*n}"); p(f"v_and_b32 v{x+3}, 0xffff0000, v{19+4*n}")
            for r in range(4): p(f"v_mul_f32 v{y+r}, v{y+r}, v{x+r}")
            p(rnd_bf16(T, y, y+1)); p(rnd_bf16(T+1, y+2, y+3))
            for r in range(4): p(f"v_mul_f32 v{y+r}, v{y+r}, v{8+t}")
            p(rnd_bf16(T, y, y+1)); p(rnd_bf16(T+1, y+2, y+3))
            p(f"ds_write_b128 v4, {v(y,4)} offset:{(t*5+n)*1024}")
    p("s_waitcnt lgkmcnt(0)")
    if stamps:
        p("s_memrealtime s[64:65]"); p("s_waitcnt lgkmcnt(0)")
        p("s_lshl_b32 s3, s2, 6"); p(f"s_add_u32 s3, s3, {200*MB + 2*65536 + 36}"); p("v_mov_b32 v2, 0"); p("s_mov_b32 s14, 0x10000000")
        p("v_mov_b32 v3, s62"); p("buffer_store_dword v3, v2, s[12:15], s3 offen"); p("v_mov_b32 v3, s64"); p("buffer_store_dword v3, v2, s[12:15], s3 offen offset:4")
    p("s_endpgm")

def gemm_wave(p, name, NT, stamps, D=4):
    NF = 4 + NT
    for t in range(5): p(f"v_add_u32 v{2+t}, {t*131072}, v1")
    p("s_lshl_b32 s27, s24, 15")
    p("s_lshl_b32 s30, s25, 19"); p("s_add_u32 s30, s30, s27"); p(f"s_add_u32 s30, s30, {CTX}")
    p("s_lshl_b32 s31, s26, 13"); p("s_add_u32 s31, s31, s27"); p(f"s_add_u32 s31, s31, {WOF}")
    W = lambda b, n: v(16 + b*36 + 4*n, 4)
    C = lambda b, t: v(16 + b*36 + 20 + 4*t, 4)
    ldW = lambda b, n: f"buffer_load_dwordx4 {W(b,n)}, v{2+n}, s[12:15], s31 offen offset:{b*1024}"
    ldC = lambda b, t: f"buffer_load_dwordx4 {C(b,t)}, v{2+t}, s[12:15], s30 offen offset:{b*1024}"
    p("v_and_b32 v7, 15, v0"); p("v_lshlrev_b32 v8, 2, v7"); p("s_lshl_b32 s27, s25, 8"); p("s_lshl_b32 s28, s24, 6"); p("s_add_u32 s27, s27, s28"); p(f"s_add_u32 s27, s27, {GATE}")
    p("buffer_load_dword v9, v8, s[12:15], s27 offen")
    for b in range(D):
        for n in range(NT): p(ldW(b, n))
        for t in range(4): p(ldC(b, t))
    acc = lambda t, n: a((t*5 + n)*4, 4)
    for r in range(80): p(f"v_accvgpr_write_b32 a{r}, 0")
    p("s_mov_b32 s32, 6")
    p(".p2align 6")
    p.label(f"{name}_gl{NT}")
    p("s_add_u32 s30, s30, 4096"); p("s_add_u32 s31, s31, 4096")
    for b in range(D):
        p(f"s_waitcnt vmcnt({(D-1)*NF})")
        for n in range(NT):
            for t in range(4): p(mfma(acc(t, n), W(b, n), C(b, t), acc(t, n)))
            p(ldW(b, n))
        for t in range(4): p(ldC(b, t))
    p("s_sub_u32 s32, s32, 1"); p(f"s_cbranch_scc0 {name}_gl{NT}")
    for b in range(D):
        p(f"s_waitcnt vmcnt({(D-1-b)*NF})")
        for n in range(NT):
            for t in range(4): p(mfma(acc(t, n), W(b, n), C(b, t), acc(t, n)))
    if stamps: p("s_memrealtime s[62:63]")
    p("s_mul_i32 s27, s24, 20480"); p("v_add_u32 v2, s27, v1")
    p("s_mul_i32 s27, s24, 5120"); p("v_add_u32 v3, s27, v1"); p(f"v_add_u32 v4, {3*20480}, v3"); p(f"v_add_u32 v5, {GA}, v3")
    p("v_sub_f32 v9, 1.0, v9"); p("v_cvt_pk_bf16_f32 v9, v9, v9"); p("v_lshlrev_b32 v9, 16, v9")
    p("v_mul_u32_u24 v6, 1152, v7"); p("v_lshrrev_b32 v8, 4, v0"); p("v_lshl_add_u32 v6, v8, 3, v6")
    p("s_lshl_b32 s27, s25, 2"); p("s_add_u32 s27, s27, s24"); p("s_mul_i32 s27, s27, 18432"); p("s_lshl_b32 s28, s26, 1"); p("s_add_u32 s27, s27, s28")
    for t in range(4):
        for n in range(NT): p(f"ds_write_b128 v2, {acc(t,n)} offset:{(t*5+n)*1024}")
    p("s_waitcnt lgkmcnt(0)"); p("s_barrier")
    if stamps: p("s_memrealtime s[64:65]")
    for n in range(NT):
        r = 16 + 20*n
        for w in range(3): p(f"ds_read_b128 {v(r+4*w,4)}, v3 offset:{w*20480 + n*1024}")
        p(f"ds_read_b128 {v(r+12,4)}, v4 offset:{n*1024}"); p(f"ds_read_b128 {v(r+16,4)}, v5 offset:{n*1024}")
        if n >= 1: fin(p, 16 + 20*(n-1), n-1, 5)
    fin(p, 16 + 20*(NT-1), NT-1, 0)
    if stamps:
        p("s_memrealtime s[66:67]"); p("s_waitcnt vmcnt(0)"); p("s_memrealtime s[68:69]")
        stamp_out(p, name, [60, 62, 64, 66, 68], 2)
    p("s_endpgm")
def fin(p, r, n, cnt):
    p(f"s_waitcnt lgkmcnt({cnt})")
    for h in range(2):
        p(f"v_pk_add_f32 {v(r+2*h,2)}, {v(r+2*h,2)}, {v(r+4+2*h,2)}"); p(f"v_pk_add_f32 {v(r+8+2*h,2)}, {v(r+8+2*h,2)}, {v(r+12+2*h,2)}")
    for h in range(2): p(f"v_pk_add_f32 {v(r+2*h,2)}, {v(r+2*h,2)}, {v(r+8+2*h,2)}")
    for j in range(4): p(f"v_fma_f32 v{r+j}, v{r+j}, v9, v{r+16+j}")
    p(f"v_cvt_pk_bf16_f32 v{r}, v{r}, v{r+1}"); p(f"v_cvt_pk_bf16_f32 v{r+1}, v{r+2}, v{r+3}")
    p(f"buffer_store_dwordx2 {v(r,2)}, v6, s[36:39], s27 offen offset:{n*32}")

def gen_k3(name, stamps=False, prio_gemm=2, prio_conv=0):
    p = Prog()
    p("s_cmp_ge_u32 s2, 256"); p(f"s_cbranch_scc1 {name}_end")
    p(f"s_load_dwordx2 s[4:5], s[0:1], {ARG['ws']}")
    p(f"s_load_dwordx4 s[40:43], s[0:1], {ARG['ssmk']}")
    p(f"s_load_dwordx2 s[10:11], s[0:1], {ARG['q']}")
    p(f"s_load_dwordx2 s[6:7], s[0:1], {ARG['out']}")
    if stamps: p("s_memrealtime s[60:61]")
    p("v_lshrrev_b32 v1, 6, v0"); p("v_and_b32 v0, 63, v0"); p("v_readfirstlane_b32 s24, v1"); p("v_lshlrev_b32 v1, 4, v0")
    p("s_and_b32 s25, s2, 7"); p("s_lshr_b32 s29, s2, 3"); p("s_and_b32 s27, s29, 3"); p("s_lshl_b32 s25, s25, 2"); p("s_add_u32 s25, s25, s27")
    p("s_lshr_b32 s29, s29, 2")
    p("s_mul_i32 s26, s29, 80"); p("s_lshl_b32 s27, s29, 6"); p("s_add_u32 s27, s27, 64"); p("s_cmp_lt_u32 s29, 4"); p("s_cselect_b32 s26, s26, s27")
    p("s_waitcnt lgkmcnt(0)")
    srd(p, 12, 4, WS_USED); srd(p, 16, 40, SZ['ssmk']); srd(p, 20, 10, SZ['q']); srd(p, 36, 6, SZ['out'])
    p("s_mov_b32 s8, s42"); p("s_mov_b32 s9, s43")
    p("s_cmp_ge_u32 s24, 4"); p(f"s_cbranch_scc1 {name}_aux")
    if prio_gemm: p(f"s_setprio {prio_gemm}")
    p("s_cmp_lt_u32 s29, 4"); p(f"s_cbranch_scc0 {name}_g4")
    gemm_wave(p, name, 5, stamps)
    p.label(f"{name}_g4"); gemm_wave(p, name, 4, stamps)
    p.label(f"{name}_aux")
    if prio_conv: p(f"s_setprio {prio_conv}")
    p("s_cmp_eq_u32 s24, 7"); p(f"s_cbranch_scc1 {name}_fetch")
    p("s_lshl_b32 s30, s2, 1"); p("s_add_u32 s30, s30, s24"); p("s_sub_u32 s30, s30, 4")
    p("s_cmp_lg_u32 s24, 6"); p(f"s_cbranch_scc1 {name}_conv")
    p("s_cmp_lt_u32 s2, 192"); p(f"s_cbranch_scc1 {name}_end")
    p("s_add_u32 s30, s2, 320")
    p.label(f"{name}_conv"); conv_wave(p, name, stamps)
    p.label(f"{name}_fetch")
    p("s_cmp_lt_u32 s29, 4"); p(f"s_cbranch_scc0 {name}_f4")
    fetcher(p, name, 5, stamps)
    p.label(f"{name}_f4"); fetcher(p, name, 4, stamps)
    p.label(f"{name}_end"); p("s_endpgm")
    p.fix_hazards()
    return kernel_head(name) + p.text(), kernel_desc(name, 240, 160), f"; @launch kernel={name} grid=(256,1,1) block=(512,1,1) lds={K3_LDS}"
```

```python
MB = 1 << 20
KF = 0
VF = 16*MB
CTX = 32*MB
WOF = 48*MB
UT = 54*MB
UTP = 4352
Y2T = 60*MB
GATE = 63*MB
FLAGS = 63*MB + 65536
WS_USED = 64*MB
WS_SIZE = 256*MB
ARG = dict(q=0, k=8, v=16, shift=24, ssmk=32, ssmD=40, bx=48, ckv=56, wq=64, wuk=72, wuv=80, wo=88, gw=96, out=104, dbg=112, ws=120)
SZ = dict(q=2359296, k=2359296, v=2359296, shift=4608, ssmk=2359296, ssmD=1152, ckv=2097152, wq=4718592, wuk=4194304, wuv=4194304, wo=4718592, gw=1152, out=2359296, dbg=256, ws=WS_SIZE)
```

```python
from core import *
from layout import *
from k1 import srd, stamp_out
from k2 import f32

def rnd_bf16(dst, a_, b_):
    return [f"v_cvt_pk_bf16_f32 v{dst}, v{a_}, v{b_}", f"v_lshlrev_b32 v{a_}, 16, v{dst}", f"v_and_b32 v{b_}, 0xffff0000, v{dst}"]

def prep_u(R, sK, sV, sSH, sWS, wid, mimic=False):
    KR, VR, W, AD, U = R, R+19, R+36, R+48, R+54
    X = U + 16
    ld = []
    ld += [f"s_and_b32 s70, s{wid}, 7", f"s_lshr_b32 s71, s{wid}, 3", "s_mul_i32 s72, s70, 144", "s_mul_i32 s73, s71, 18432", "s_add_u32 s72, s72, s73"]
    ld += [f"v_lshl_add_u32 v{AD}, v0, 2, s72", "v_cmp_gt_u32 vcc, 36, v0", f"v_mov_b32 v{AD+1}, 0x7f000000", f"v_cndmask_b32 v{AD}, v{AD+1}, v{AD}, vcc"]
    for j in range(3): ld += [f"v_subrev_u32 v{AD+2}, {1152*(3-j)}, v{AD}", f"buffer_load_dword v{KR+j}, v{AD+2}, s[{sK}:{sK+3}], 0 offen"]
    for j in range(16):
        if j % 3 == 0 and j: ld += [f"v_add_u32 v{AD}, 3456, v{AD}"]
        ld += [f"buffer_load_dword v{KR+3+j}, v{AD}, s[{sK}:{sK+3}], 0 offen offset:{1152*(j%3)}", f"buffer_load_dword v{VR+j}, v{AD}, s[{sV}:{sV+3}], 0 offen offset:{1152*(j%3)}"]
    ld += ["s_mul_i32 s73, s70, 576", f"v_lshl_add_u32 v{AD+2}, v0, 4, s73", f"buffer_load_dwordx4 {v(W+8,4)}, v{AD+2}, s[{sSH}:{sSH+3}], 0 offen"]
    ld += [f"s_mul_i32 s72, s70, {72*2*UTP}", "s_lshl_b32 s73, s71, 5", "s_sub_u32 s72, s72, s73", f"s_add_u32 s72, s72, {UT + 128 + 2032*2}",
           f"s_mov_b32 s73, {4*UTP}", f"v_mul_lo_u32 v{AD+3}, v0, s73", f"v_add_u32 v{AD+3}, s72, v{AD+3}", f"v_cndmask_b32 v{AD+3}, v{AD+1}, v{AD+3}, vcc",
           f"v_add_u32 v{AD+4}, {UTP-2}, v{AD+3}"]
    cp = []
    for c in range(2):
        for j in range(4):
            raw = W + 8 + c*2 + j//2
            cp.append(f"v_lshlrev_b32 v{W+c*4+j}, 16, v{raw}" if j % 2 == 0 else f"v_and_b32 v{W+c*4+j}, 0xffff0000, v{raw}")
    for c in range(2):
        def unp(dst, raw): return f"v_lshlrev_b32 v{dst}, 16, v{raw}" if c == 0 else f"v_and_b32 v{dst}, 0xffff0000, v{raw}"
        kk = lambda r: X + (r % 5)
        for r in range(3): cp.append(unp(kk(r), KR+r))
        for s2 in range(8):
            for h in range(2): cp.append(unp(kk(2*s2+h+3), KR+2*s2+h+3))
            A_, B_ = X+5, X+6; C_, D_ = X+7, X+8; T_ = X+9
            s_ = 2*s2
            if not mimic:
                for h, acc in ((0, A_), (1, B_)):
                    cp.append(f"v_mul_f32 v{acc}, v{kk(s_+h)}, v{W+c*4+3}")
                for j in (2, 1, 0):
                    for h, acc in ((0, A_), (1, B_)): cp.append(f"v_fmac_f32 v{acc}, v{kk(s_+h+3-j)}, v{W+c*4+j}")
            else:
                for h, acc in ((0, A_), (1, B_)): cp.append(f"v_mul_f32 v{acc}, v{kk(s_+h)}, v{W+c*4+3}")
                cp += rnd_bf16(T_, A_, B_)
                for j in (2, 1, 0):
                    for h, acc in ((0, C_), (1, D_)): cp.append(f"v_mul_f32 v{acc}, v{kk(s_+h+3-j)}, v{W+c*4+j}")
                    cp += rnd_bf16(T_, C_, D_)
                    cp += [f"v_add_f32 v{A_}, v{A_}, v{C_}", f"v_add_f32 v{B_}, v{B_}, v{D_}"]
                    cp += rnd_bf16(T_, A_, B_)
            cp += [unp(C_, VR+s_), unp(D_, VR+s_+1), f"v_mul_f32 v{A_}, v{A_}, v{C_}", f"v_mul_f32 v{B_}, v{B_}, v{D_}"]
            cp.append(f"v_cvt_pk_bf16_f32 v{U + c*8 + 7 - s2}, v{B_}, v{A_}")
    st = []
    for c in range(2):
        if c: st += [f"v_add_u32 v{AD+3}, {2*UTP}, v{AD+3}", f"v_add_u32 v{AD+4}, {2*UTP}, v{AD+4}"]
        for cpy in range(2):
            for h in range(2): st.append(f"buffer_store_dwordx4 {v(U+c*8+4*h,4)}, v{AD+3+cpy}, s[{sWS}:{sWS+3}], 0 offen offset:{16*h}")
    return ld, cp, st

def prep_gate(R, sX, sGW, sWS, wid):
    XR, GR, AD, AC = R, R+9, R+18, R+21
    ld = [f"s_mul_i32 s70, s{wid}, 2304", f"v_and_b32 v{AD}, 31, v0", f"v_lshlrev_b32 v{AD}, 2, v{AD}", f"v_lshrrev_b32 v{AD+1}, 5, v0",
          f"v_mul_u32_u24 v{AD+1}, 1152, v{AD+1}", f"v_add3_u32 v{AD+1}, v{AD+1}, v{AD}, s70"]
    for j in range(9):
        ld += [f"buffer_load_dword v{XR+j}, v{AD+1}, s[{sX}:{sX+3}], 0 offen offset:{128*j}", f"buffer_load_dword v{GR+j}, v{AD}, s[{sGW}:{sGW+3}], 0 offen offset:{128*j}"]
    cp = [f"v_mov_b32 v{AC}, 0"]
    a_, b_, c_, d_, t_ = AC+1, AC+2, AC+3, AC+4, AC+5
    for j in range(9):
        cp += [f"v_lshlrev_b32 v{a_}, 16, v{XR+j}", f"v_and_b32 v{b_}, 0xffff0000, v{XR+j}", f"v_lshlrev_b32 v{c_}, 16, v{GR+j}", f"v_and_b32 v{d_}, 0xffff0000, v{GR+j}",
               f"v_mul_f32 v{a_}, v{a_}, v{c_}", f"v_mul_f32 v{b_}, v{b_}, v{d_}"] + rnd_bf16(t_, a_, b_) + [f"v_add_f32 v{AC}, v{AC}, v{a_}", f"v_add_f32 v{AC}, v{AC}, v{b_}"]
    for m in ("quad_perm:[1,0,3,2]", "quad_perm:[2,3,0,1]", "row_half_mirror", "row_mirror"):
        cp.append(f"v_add_f32_dpp v{AC}, v{AC}, v{AC} {m} row_mask:0xf bank_mask:0xf")
    cp += [f"v_mov_b32 v{a_}, v{AC}", f"v_permlane16_swap_b32 v{AC}, v{a_}", f"v_add_f32 v{AC}, v{AC}, v{a_}"]
    cp += [f"v_cvt_pk_bf16_f32 v{t_}, v{AC}, v{AC}", f"v_lshlrev_b32 v{AC}, 16, v{t_}",
           f"v_mul_f32 v{AC}, {f32(-1.4426950408889634)}, v{AC}", f"v_exp_f32 v{AC}, v{AC}", f"v_add_f32 v{AC}, 1.0, v{AC}", f"v_rcp_f32 v{AC}, v{AC}",
           f"v_cvt_pk_bf16_f32 v{t_}, v{AC}, v{AC}", f"v_lshlrev_b32 v{AC}, 16, v{t_}"]
    cp += [f"s_lshl_b32 s70, s{wid}, 3", f"s_add_u32 s70, s70, {GATE}", f"v_lshrrev_b32 v{a_}, 3, v0", f"v_add_u32 v{a_}, s70, v{a_}",
           f"v_cmp_eq_u32 vcc, 0, v{AD}", f"v_mov_b32 v{b_}, 0x7f000000", f"v_cndmask_b32 v{a_}, v{b_}, v{a_}, vcc"]
    st = [f"buffer_store_dword v{AC}, v{a_}, s[{sWS}:{sWS+3}], 0 offen"]
    return ld, cp, st

def prep_wo(R, sWO, sWS, wg, wave, ldsbase):
    AD = R
    ld = [f"s_lshr_b32 s70, s{wg}, 1", "s_mul_i32 s70, s70, 36864", f"s_and_b32 s71, s{wg}, 1", "s_mul_i32 s72, s71, 576", "s_add_u32 s70, s70, s72",
          f"s_mul_i32 s72, s{wave}, 320", f"v_add_u32 v{AD}, s72, v0", "s_mov_b32 s73, 0x71c71c8"]
    ld += [f"s_mul_i32 s72, s{wave}, 5120", f"s_add_u32 s72, s72, {ldsbase}"]
    for i in range(5):
        ld += [f"v_mul_hi_u32 v{AD+1}, v{AD}, s73", f"v_mul_u32_u24 v{AD+2}, 36, v{AD+1}", f"v_sub_u32 v{AD+2}, v{AD}, v{AD+2}",
               f"v_mul_u32_u24 v{AD+1}, 1152, v{AD+1}", f"v_lshl_add_u32 v{AD+1}, v{AD+2}, 4, v{AD+1}",
               f"v_cmp_gt_u32 vcc, 1152, v{AD}", f"v_mov_b32 v{AD+2}, 0x7f000000", f"v_cndmask_b32 v{AD+1}, v{AD+2}, v{AD+1}, vcc",
               f"s_add_u32 m0, s72, {i*1024}", f"v_add_u32 v{AD}, 64, v{AD}", f"buffer_load_dwordx4 v{AD+1}, s[{sWO}:{sWO+3}], s70 offen lds"]
    cp = [f"v_lshrrev_b32 v{AD}, 2, v0", f"v_mul_u32_u24 v{AD}, 576, v{AD}", f"v_and_b32 v{AD+1}, 3, v0", f"v_lshl_add_u32 v{AD}, v{AD+1}, 3, v{AD}",
          f"s_lshl_b32 s72, s{wave}, 5", f"s_add_u32 s72, s72, {ldsbase}", f"v_add_u32 v{AD}, s72, v{AD}"]
    D = R + 4
    for i in range(5):
        cp += [f"ds_read_b64_tr_b16 {v(D+4*i,2)}, v{AD} offset:{i*128}", f"ds_read_b64_tr_b16 {v(D+4*i+2,2)}, v{AD} offset:{i*128 + 16*576}"]
    cp += [f"s_and_b32 s71, s{wg}, 1", "s_mul_i32 s71, s71, 18", f"s_add_u32 s71, s71, s{wave}", "s_lshl_b32 s71, s71, 17", f"s_lshr_b32 s70, s{wg}, 1", "s_lshl_b32 s70, s70, 10",
           "s_add_u32 s71, s71, s70", f"s_add_u32 s71, s71, {WOF}", f"v_lshlrev_b32 v{AD+1}, 4, v0"]
    st = []
    for i in range(5):
        if i == 4: st += [f"s_cmp_lt_u32 s{wave}, 2", "s_cselect_b32 s71, s71, 0x7f000000"]
        st += [f"buffer_store_dwordx4 {v(D+4*i,4)}, v{AD+1}, s[{sWS}:{sWS+3}], s71 offen"]
        if i < 4: st += [f"s_add_u32 s71, s71, {4*131072}"]
    return ld, cp, st

def gen_prep(name, mimic=False):
    p = Prog()
    p("s_cmp_ge_u32 s2, 256"); p(f"s_cbranch_scc1 {name}_end")
    p("s_load_dwordx8 s[4:11], s[0:1], 0")
    p(f"s_load_dwordx4 s[12:15], s[0:1], {ARG['wo']}")
    p(f"s_load_dwordx2 s[16:17], s[0:1], {ARG['ws']}")
    p("v_lshrrev_b32 v1, 6, v0"); p("v_and_b32 v0, 63, v0"); p("v_readfirstlane_b32 s24, v1")
    p("s_lshl_b32 s25, s2, 2"); p("s_add_u32 s25, s25, s24")
    p("s_waitcnt lgkmcnt(0)")
    srd(p, 28, 4, SZ['q']); srd(p, 32, 6, SZ['k']); srd(p, 36, 8, SZ['v']); srd(p, 40, 10, SZ['shift']); srd(p, 44, 12, SZ['wo']); srd(p, 48, 14, SZ['gw']); srd(p, 52, 16, WS_USED)
    u = prep_u(4, 32, 36, 40, 52, 25, mimic); g = prep_gate(92, 28, 48, 52, 25); w = prep_wo(128, 44, 52, 2, 24, 0)
    p(w[0]); p(u[0]); p(g[0])
    p("v_lshl_add_u32 v2, s25, 6, v0"); p("v_cmp_gt_u32 vcc, 576, v2"); p("v_lshlrev_b32 v2, 2, v2"); p(f"v_add_u32 v2, {FLAGS}, v2")
    p("v_mov_b32 v3, 0x7f000000"); p("v_cndmask_b32 v2, v3, v2, vcc"); p("v_mov_b32 v3, 0"); p("buffer_store_dword v3, v2, s[52:55], 0 offen")
    p("s_waitcnt vmcnt(0)"); p("s_barrier")
    p(w[1]); p(u[1]); p(u[2]); p(g[1]); p(g[2]); p("s_waitcnt lgkmcnt(0)");
    p(w[1][-9:]); p(w[2])
    p.label(f"{name}_end"); p("s_endpgm")
    p.fix_hazards()
    return kernel_head(name) + p.text(), kernel_desc(name, 160, 160), f"; @launch kernel={name} grid=(256,1,1) block=(256,1,1) lds=20480"
```

```python
import sys, importlib
from core import *
HEADER = open('gated_mix__ssm_conv_h3__compressed_kv_cla__prompt.s.ref').read().split('; Override launch')[0]
def assemble(parts, path):
    txt = HEADER + "\n".join(x[2] for x in parts) + '\n.amdgcn_target "amdgcn-amd-amdhsa--gfx950"\n'
    for b, d, l in parts: txt += b
    for b, d, l in parts: txt += d
    open(path, 'w').write(txt)
if __name__ == "__main__":
    from k1 import gen_k1
    from k2 import gen_k2
    from k3 import gen_k3
    from prep import gen_prep
    assemble([gen_prep("prep_kernel", True), gen_k1("k1_kernel", stamps=True), gen_k2("k2_kernel", stamps=True), gen_k3("k3_kernel", stamps=True)], "t_all.s")
    assemble([gen_prep("prep_kernel", True), gen_k1("k1_kernel"), gen_k2("k2_kernel"), gen_k3("k3_kernel")], "gated_mix__ssm_conv_h3__compressed_kv_cla__prompt.s")
```

```python
from core import *
from layout import *
from k1 import srd, stamp_out
from k2 import f32
from prep import rnd_bf16

RED = 0
CV = 81920
CVS = 13056
XT = CV + 3*CVS
YT = XT + 10240
GA = YT + 10240
K3_LDS = GA + 20480

SLEEP = [8]
INTERLEAVE = [False]
def conv_wave(p, name, stamps):
    p("s_sub_u32 s27, s24, 4"); p(f"s_mul_i32 s31, s27, {CVS}"); p(f"s_add_u32 s31, s31, {CV}")
    p(f"s_mul_i32 s32, s30, {2*UTP}"); p(f"s_add_u32 s32, s32, {UT+128}")
    p("s_mov_b32 m0, s31")
    for i in range(4): p(f"buffer_load_dwordx4 v1, s[12:15], s32 offen offset:{i*1024} lds")
    p("s_lshl_b32 s33, s30, 12"); p("s_add_u32 m0, s31, 8832")
    for i in range(4): p(f"buffer_load_dwordx4 v1, s[16:19], s33 offen offset:{i*1024} lds")
    p(f"s_add_u32 s32, s32, {UTP}"); p("s_add_u32 m0, s31, 4160")
    for i in range(4): p(f"buffer_load_dwordx4 v1, s[12:15], s32 offen offset:{i*1024} lds")
    p("s_and_b32 s27, s30, 0xfffe"); p("s_lshl_b32 s27, s27, 1"); p("s_load_dword s34, s[8:9], s27")
    p("v_add_u32 v2, 8256, v1"); p("v_and_b32 v3, 48, v1"); p("v_add_u32 v3, 4096, v3"); p("v_cmp_gt_u32 vcc, 36, v0"); p("v_cndmask_b32 v2, v3, v2, vcc")
    p("v_add_u32 v2, s31, v2")
    for r in range(4): p(f"v_mov_b32 v{112+r}, 0")
    p("ds_write_b128 v2, v[112:115]")
    p("v_and_b32 v2, 15, v0"); p("v_lshrrev_b32 v3, 4, v0")
    p("v_sub_u32 v4, 15, v2"); p("v_and_b32 v5, 1, v4"); p("v_mul_u32_u24 v5, 4160, v5"); p("v_lshrrev_b32 v4, 1, v4")
    p("v_lshl_add_u32 v5, v4, 2, v5"); p("v_lshl_add_u32 v5, v3, 4, v5"); p("v_add_u32 v5, s31, v5")
    for q in range(4): p(f"v_add_u32 v{8+q}, {4032 - 512*(2*q+1) - 448}, v5")
    p("v_lshlrev_b32 v6, 5, v2"); p("v_lshl_add_u32 v12, v3, 4, v6"); p(f"s_add_u32 s27, s31, {8832 - 32 - 448}"); p("v_add_u32 v12, s27, v12")
    p("v_lshl_add_u32 v13, v3, 3, v6")
    p(f"s_add_u32 s27, s31, {4088 - 3584}"); p("v_sub_u32 v14, s27, v13")
    p(f"s_add_u32 s27, s31, {4160+4094}"); p("v_mov_b32 v15, s27")
    p("s_waitcnt vmcnt(0)")
    p("ds_write_b16 v15, v112")
    def fr(b, n): return (v(16 + 4*n, 4) if b == 0 else a(4*n, 4))
    def fr2(b, n, h): return (v(16 + 4*n + 2*h, 2) if b == 0 else a(4*n + 2*h, 2))
    def reads(rho):
        b = rho % 2; o = []
        for x in range(8):
            off = (7 - rho)*16 + (128 if x % 2 == 0 else 0)
            o.append([f"ds_read2_b32 {fr2(b,x,0)}, v{8 + x//2} offset0:{off} offset1:{off+1}", f"ds_read2_b32 {fr2(b,x,1)}, v{8 + x//2} offset0:{off+2} offset1:{off+3}"])
        B_ = [f"ds_read_b128 {fr(b,8+d)}, v12 offset:{(7-rho)*64 + 512*d}" for d in range(8)]
        return o[0] + B_ + [y for x in o[1:] for y in x]
    p("s_waitcnt lgkmcnt(0)")
    p(reads(0))
    ACC = 80
    for rho in range(8):
        b = rho % 2; mf = []
        for x in range(8):
            for d in range(8 - x):
                c = x + d; D = v(ACC + 4*c, 4)
                mf.append([[], mfma(D, fr(b, x), fr(b, 8+d), "0" if (rho == 0 and x == 0) else D)])
        mf[0][0] = ["s_waitcnt lgkmcnt(0)"]
        rd = reads(rho+1) if rho < 7 else [f"ds_read_b64 {v(16+2*c,2)}, v14 offset:{512*(7-c)}" for c in range(8)]
        p(weave(mf, [[(1, [x], k, 0, 30) for k, x in enumerate(rd)]]))
    p("s_waitcnt lgkmcnt(0)")
    p("s_bitcmp1_b32 s30, 0"); p("s_cselect_b32 s27, 0, 16"); p("s_lshl_b32 s34, s34, s27"); p("s_and_b32 s34, s34, 0xffff0000")
    p("s_lshl_b32 s33, s30, 12"); p(f"s_add_u32 s33, s33, {Y2T}")
    for c in range(8):
        y = ACC + 4*c; u = 48 + 4*(c % 2); t = 56
        p(f"v_and_b32 v{u}, 0xffff0000, v{16+2*c+1}"); p(f"v_lshlrev_b32 v{u+1}, 16, v{16+2*c+1}")
        p(f"v_and_b32 v{u+2}, 0xffff0000, v{16+2*c}"); p(f"v_lshlrev_b32 v{u+3}, 16, v{16+2*c}")
        for r in range(4): p(f"v_mul_f32 v{u+r}, s34, v{u+r}")
        p(rnd_bf16(t, u, u+1)); p(rnd_bf16(t+1, u+2, u+3)); p(rnd_bf16(t, y, y+1)); p(rnd_bf16(t+1, y+2, y+3))
        for r in range(4): p(f"v_add_f32 v{y+r}, v{y+r}, v{u+r}")
        p(f"v_cvt_pk_bf16_f32 v{y}, v{y}, v{y+1}"); p(f"v_cvt_pk_bf16_f32 v{y+1}, v{y+2}, v{y+3}")
        p(f"buffer_store_dwordx2 {v(y,2)}, v13, s[12:15], s33 offen offset:{512*c} sc1")
    p("s_lshl_b32 s33, s30, 2"); p(f"s_add_u32 s33, s33, {FLAGS}"); p("v_mov_b32 v2, 0"); p("v_mov_b32 v3, 1")
    p("s_mov_b64 exec, 1")
    p("s_waitcnt vmcnt(0)")
    p("buffer_store_dword v3, v2, s[12:15], s33 offen sc1")
    if stamps:
        p("s_memrealtime s[62:63]"); p("s_waitcnt lgkmcnt(0)")
        p("s_cmp_lg_u32 s24, 4"); p(f"s_cbranch_scc1 {name}_end")
        p("s_lshl_b32 s3, s2, 6"); p(f"s_add_u32 s3, s3, {200*MB + 2*65536 + 32}"); p("v_mov_b32 v3, s62"); p("s_mov_b32 s14, 0x10000000"); p("buffer_store_dword v3, v2, s[12:15], s3 offen")
    p("s_endpgm")

def fetcher(p, name, NT, stamps):
    CH = 2*NT
    npc = CH
    p("s_mul_i32 s27, s25, 73728"); p("s_lshl_b32 s28, s26, 1"); p("s_add_u32 s27, s27, s28")
    p("v_mov_b32 v2, v0"); p(f"s_mov_b32 s28, {-(-(1<<32)//CH):#x}")
    for i in range(npc):
        p("v_mul_hi_u32 v3, v2, s28"); p(f"v_mul_u32_u24 v4, {CH}, v3"); p("v_sub_u32 v4, v2, v4"); p("v_mul_u32_u24 v3, 1152, v3"); p("v_lshl_add_u32 v3, v4, 4, v3")
        p(f"s_mov_b32 m0, {XT + i*1024}"); p("v_add_u32 v2, 64, v2"); p("buffer_load_dwordx4 v3, s[20:23], s27 offen lds")
    p("v_and_b32 v5, 15, v0"); p("v_lshlrev_b32 v6, 2, v5"); p("s_lshl_b32 s27, s25, 8"); p(f"s_add_u32 s27, s27, {GATE}")
    for t in range(4): p(f"buffer_load_dword v{8+t}, v6, s[12:15], s27 offen offset:{64*t}")
    p("v_lshlrev_b32 v2, 2, v0"); p("s_lshl_b32 s27, s26, 2"); p(f"s_add_u32 s27, s27, {FLAGS}")
    p("s_mov_b32 s35, 100000")
    p.label(f"{name}_poll{NT}")
    p("buffer_load_dword v3, v2, s[12:15], s27 offen sc1")
    if NT == 5: p("buffer_load_dword v4, v6, s[12:15], s27 offen offset:256 sc1")
    p("s_waitcnt vmcnt(0)")
    if NT == 5: p("v_and_b32 v3, v3, v4")
    p("v_cmp_ne_u32 vcc, 1, v3"); p(f"s_cbranch_vccz {name}_ready{NT}")
    p(f"s_sleep {SLEEP[0]}"); p("s_sub_u32 s35, s35, 1"); p(f"s_cbranch_scc0 {name}_poll{NT}")
    p.label(f"{name}_ready{NT}")
    if stamps: p("s_memrealtime s[62:63]")
    p("v_lshrrev_b32 v2, 3, v0"); p("v_lshlrev_b32 v2, 12, v2"); p("v_and_b32 v3, 7, v0"); p("v_lshl_add_u32 v2, v3, 4, v2")
    p("s_lshl_b32 s27, s26, 12"); p("s_lshl_b32 s28, s25, 7"); p("s_add_u32 s27, s27, s28"); p(f"s_add_u32 s27, s27, {Y2T}")
    for i in range(2*NT):
        p(f"buffer_load_dwordx4 {v(16+4*i,4)}, v2, s[12:15], s27 offen sc1"); p("s_add_u32 s27, s27, 32768")
    p(f"v_add_u32 v2, {YT}, v1")
    for i in range(2*NT):
        p(f"s_waitcnt vmcnt({2*NT-1-i})"); p(f"ds_write_b128 v2, {v(16+4*i,4)} offset:{i*1024}")
    p("v_lshrrev_b32 v2, 2, v0"); p("v_lshlrev_b32 v2, 7, v2"); p("v_and_b32 v3, 3, v0"); p("v_lshl_add_u32 v2, v3, 3, v2"); p(f"v_add_u32 v2, {YT}, v2")
    p(f"v_mul_u32_u24 v3, {CH*16}, v5"); p("v_lshrrev_b32 v4, 4, v0"); p("v_lshl_add_u32 v3, v4, 3, v3"); p(f"v_add_u32 v3, {XT}, v3")
    p(f"v_add_u32 v4, {GA}, v1")
    p("s_waitcnt lgkmcnt(0)")
    for t in range(4):
        for n in range(NT):
            p(f"ds_read_b64_tr_b16 {v(16+4*n,2)}, v2 offset:{n*2048 + t*32}"); p(f"ds_read_b64 {v(18+4*n,2)}, v3 offset:{t*16*CH*16 + n*32}")
        p("s_waitcnt lgkmcnt(0)")
        for n in range(NT):
            y = 40 + 8*(n % 2); x = y + 4; T = 60
            p(f"v_lshlrev_b32 v{y}, 16, v{16+4*n}"); p(f"v_and_b32 v{y+1}, 0xffff0000, v{16+4*n}"); p(f"v_lshlrev_b32 v{y+2}, 16, v{17+4*n}"); p(f"v_and_b32 v{y+3}, 0xffff0000, v{17+4*n}")
            p(f"v_lshlrev_b32 v{x}, 16, v{18+4*n}"); p(f"v_and_b32 v{x+1}, 0xffff0000, v{18+4*n}"); p(f"v_lshlrev_b32 v{x+2}, 16, v{19+4*n}"); p(f"v_and_b32 v{x+3}, 0xffff0000, v{19+4*n}")
            for r in range(4): p(f"v_mul_f32 v{y+r}, v{y+r}, v{x+r}")
            p(rnd_bf16(T, y, y+1)); p(rnd_bf16(T+1, y+2, y+3))
            for r in range(4): p(f"v_mul_f32 v{y+r}, v{y+r}, v{8+t}")
            p(rnd_bf16(T, y, y+1)); p(rnd_bf16(T+1, y+2, y+3))
            p(f"ds_write_b128 v4, {v(y,4)} offset:{(t*5+n)*1024}")
    p("s_waitcnt lgkmcnt(0)")
    if stamps:
        p("s_memrealtime s[64:65]"); p("s_waitcnt lgkmcnt(0)")
        p("s_lshl_b32 s3, s2, 6"); p(f"s_add_u32 s3, s3, {200*MB + 2*65536 + 36}"); p("v_mov_b32 v2, 0"); p("s_mov_b32 s14, 0x10000000")
        p("v_mov_b32 v3, s62"); p("buffer_store_dword v3, v2, s[12:15], s3 offen"); p("v_mov_b32 v3, s64"); p("buffer_store_dword v3, v2, s[12:15], s3 offen offset:4")
    p("s_endpgm")

def gemm_wave(p, name, NT, stamps, D=4):
    NF = 4 + NT
    for t in range(5): p(f"v_add_u32 v{2+t}, {t*131072}, v1")
    p(f"s_lshl_b32 s27, s24, {12 if INTERLEAVE[0] else 15}")
    p("s_lshl_b32 s30, s25, 19"); p("s_add_u32 s30, s30, s27"); p(f"s_add_u32 s30, s30, {CTX}")
    p("s_lshl_b32 s31, s26, 13"); p("s_add_u32 s31, s31, s27"); p(f"s_add_u32 s31, s31, {WOF}")
    W = lambda b, n: v(16 + b*36 + 4*n, 4)
    C = lambda b, t: v(16 + b*36 + 20 + 4*t, 4)
    ldW = lambda b, n: f"buffer_load_dwordx4 {W(b,n)}, v{2+n}, s[12:15], s31 offen offset:{b*1024}"
    ldC = lambda b, t: f"buffer_load_dwordx4 {C(b,t)}, v{2+t}, s[12:15], s30 offen offset:{b*1024}"
    p("v_and_b32 v7, 15, v0"); p("v_lshlrev_b32 v8, 2, v7"); p("s_lshl_b32 s27, s25, 8"); p("s_lshl_b32 s28, s24, 6"); p("s_add_u32 s27, s27, s28"); p(f"s_add_u32 s27, s27, {GATE}")
    p("buffer_load_dword v9, v8, s[12:15], s27 offen")
    for b in range(D):
        for n in range(NT): p(ldW(b, n))
        for t in range(4): p(ldC(b, t))
    acc = lambda t, n: a((t*5 + n)*4, 4)
    for r in range(80): p(f"v_accvgpr_write_b32 a{r}, 0")
    p("s_mov_b32 s32, 6")
    p(".p2align 6")
    p.label(f"{name}_gl{NT}")
    adv = 16384 if INTERLEAVE[0] else 4096
    p(f"s_add_u32 s30, s30, {adv}"); p(f"s_add_u32 s31, s31, {adv}")
    for b in range(D):
        p(f"s_waitcnt vmcnt({(D-1)*NF})")
        for n in range(NT):
            for t in range(4): p(mfma(acc(t, n), W(b, n), C(b, t), acc(t, n)))
            p(ldW(b, n))
        for t in range(4): p(ldC(b, t))
    p("s_sub_u32 s32, s32, 1"); p(f"s_cbranch_scc0 {name}_gl{NT}")
    for b in range(D):
        p(f"s_waitcnt vmcnt({(D-1-b)*NF})")
        for n in range(NT):
            for t in range(4): p(mfma(acc(t, n), W(b, n), C(b, t), acc(t, n)))
    if stamps: p("s_memrealtime s[62:63]")
    p("s_mul_i32 s27, s24, 20480"); p("v_add_u32 v2, s27, v1")
    p("s_mul_i32 s27, s24, 5120"); p("v_add_u32 v3, s27, v1"); p(f"v_add_u32 v4, {3*20480}, v3"); p(f"v_add_u32 v5, {GA}, v3")
    p("v_sub_f32 v9, 1.0, v9"); p("v_cvt_pk_bf16_f32 v9, v9, v9"); p("v_lshlrev_b32 v9, 16, v9")
    p("v_mul_u32_u24 v6, 1152, v7"); p("v_lshrrev_b32 v8, 4, v0"); p("v_lshl_add_u32 v6, v8, 3, v6")
    p("s_lshl_b32 s27, s25, 2"); p("s_add_u32 s27, s27, s24"); p("s_mul_i32 s27, s27, 18432"); p("s_lshl_b32 s28, s26, 1"); p("s_add_u32 s27, s27, s28")
    for t in range(4):
        for n in range(NT): p(f"ds_write_b128 v2, {acc(t,n)} offset:{(t*5+n)*1024}")
    p("s_waitcnt lgkmcnt(0)"); p("s_barrier")
    if stamps: p("s_memrealtime s[64:65]")
    for n in range(NT):
        r = 16 + 20*n
        for w in range(3): p(f"ds_read_b128 {v(r+4*w,4)}, v3 offset:{w*20480 + n*1024}")
        p(f"ds_read_b128 {v(r+12,4)}, v4 offset:{n*1024}"); p(f"ds_read_b128 {v(r+16,4)}, v5 offset:{n*1024}")
        if n >= 1: fin(p, 16 + 20*(n-1), n-1, 5)
    fin(p, 16 + 20*(NT-1), NT-1, 0)
    if stamps:
        p("s_memrealtime s[66:67]"); p("s_waitcnt vmcnt(0)"); p("s_memrealtime s[68:69]")
        stamp_out(p, name, [60, 62, 64, 66, 68], 2)
    p("s_endpgm")
def fin(p, r, n, cnt):
    p(f"s_waitcnt lgkmcnt({cnt})")
    for h in range(2):
        p(f"v_pk_add_f32 {v(r+2*h,2)}, {v(r+2*h,2)}, {v(r+4+2*h,2)}"); p(f"v_pk_add_f32 {v(r+8+2*h,2)}, {v(r+8+2*h,2)}, {v(r+12+2*h,2)}")
    for h in range(2): p(f"v_pk_add_f32 {v(r+2*h,2)}, {v(r+2*h,2)}, {v(r+8+2*h,2)}")
    for j in range(4): p(f"v_fma_f32 v{r+j}, v{r+j}, v9, v{r+16+j}")
    p(f"v_cvt_pk_bf16_f32 v{r}, v{r}, v{r+1}"); p(f"v_cvt_pk_bf16_f32 v{r+1}, v{r+2}, v{r+3}")
    p(f"buffer_store_dwordx2 {v(r,2)}, v6, s[36:39], s27 offen offset:{n*32}")

def gen_k3(name, stamps=False, prio_gemm=2, prio_conv=0, noaux=False, mapping=0, sleep=8, rot=False):
    p = Prog(); SLEEP[0] = sleep; INTERLEAVE[0] = rot
    p("s_cmp_ge_u32 s2, 256"); p(f"s_cbranch_scc1 {name}_end")
    p(f"s_load_dwordx2 s[4:5], s[0:1], {ARG['ws']}")
    p(f"s_load_dwordx4 s[40:43], s[0:1], {ARG['ssmk']}")
    p(f"s_load_dwordx2 s[10:11], s[0:1], {ARG['q']}")
    p(f"s_load_dwordx2 s[6:7], s[0:1], {ARG['out']}")
    if stamps: p("s_memrealtime s[60:61]")
    p("v_lshrrev_b32 v1, 6, v0"); p("v_and_b32 v0, 63, v0"); p("v_readfirstlane_b32 s24, v1"); p("v_lshlrev_b32 v1, 4, v0")
    if mapping == 0:
        p("s_and_b32 s25, s2, 7"); p("s_lshr_b32 s29, s2, 3"); p("s_and_b32 s27, s29, 3"); p("s_lshl_b32 s25, s25, 2"); p("s_add_u32 s25, s25, s27")
        p("s_lshr_b32 s29, s29, 2")
    elif mapping == 1:
        p("s_and_b32 s25, s2, 6"); p("s_lshr_b32 s29, s2, 3"); p("s_and_b32 s27, s29, 7"); p("s_lshl_b32 s25, s25, 2"); p("s_add_u32 s25, s25, s27")
        p("s_lshr_b32 s29, s29, 3"); p("s_lshl_b32 s29, s29, 1"); p("s_and_b32 s27, s2, 1"); p("s_add_u32 s29, s29, s27")
    elif mapping == 2:
        p("s_and_b32 s25, s2, 4"); p("s_lshr_b32 s29, s2, 3"); p("s_and_b32 s27, s29, 15"); p("s_lshl_b32 s25, s25, 2"); p("s_add_u32 s25, s25, s27")
        p("s_lshr_b32 s29, s29, 4"); p("s_lshl_b32 s29, s29, 2"); p("s_and_b32 s27, s2, 3"); p("s_add_u32 s29, s29, s27")
    p("s_mul_i32 s26, s29, 80"); p("s_lshl_b32 s27, s29, 6"); p("s_add_u32 s27, s27, 64"); p("s_cmp_lt_u32 s29, 4"); p("s_cselect_b32 s26, s26, s27")
    p("s_waitcnt lgkmcnt(0)")
    srd(p, 12, 4, WS_USED); srd(p, 16, 40, SZ['ssmk']); srd(p, 20, 10, SZ['q']); srd(p, 36, 6, SZ['out'])
    p("s_mov_b32 s8, s42"); p("s_mov_b32 s9, s43")
    p("s_cmp_ge_u32 s24, 4"); p(f"s_cbranch_scc1 {name}_aux")
    if prio_gemm: p(f"s_setprio {prio_gemm}")
    p("s_cmp_lt_u32 s29, 4"); p(f"s_cbranch_scc0 {name}_g4")
    gemm_wave(p, name, 5, stamps)
    p.label(f"{name}_g4"); gemm_wave(p, name, 4, stamps)
    p.label(f"{name}_aux")
    if noaux: p("s_endpgm")
    if prio_conv: p(f"s_setprio {prio_conv}")
    p("s_cmp_eq_u32 s24, 7"); p(f"s_cbranch_scc1 {name}_fetch")
    p("s_lshl_b32 s30, s2, 1"); p("s_add_u32 s30, s30, s24"); p("s_sub_u32 s30, s30, 4")
    p("s_cmp_lg_u32 s24, 6"); p(f"s_cbranch_scc1 {name}_conv")
    p("s_cmp_lt_u32 s2, 192"); p(f"s_cbranch_scc1 {name}_end")
    p("s_add_u32 s30, s2, 320")
    p.label(f"{name}_conv"); conv_wave(p, name, stamps)
    p.label(f"{name}_fetch")
    p("s_cmp_lt_u32 s29, 4"); p(f"s_cbranch_scc0 {name}_f4")
    fetcher(p, name, 5, stamps)
    p.label(f"{name}_f4"); fetcher(p, name, 4, stamps)
    p.label(f"{name}_end"); p("s_endpgm")
    p.fix_hazards()
    return kernel_head(name) + p.text(), kernel_desc(name, 240, 160), f"; @launch kernel={name} grid=(256,1,1) block=(512,1,1) lds={K3_LDS}"
```

```python
from build import assemble
from core import *
from layout import *
from k1 import gen_k1, srd
from k2 import gen_k2
from k3 import gen_k3
from prep import gen_prep
def empty(name):
    return kernel_head(name) + "  s_endpgm\n", kernel_desc(name, 8, 8), f"; @launch kernel={name} grid=(256,1,1) block=(256,1,1) lds=0"
def touch(name, code=True, data=True):
    p = Prog()
    p("s_cmp_ge_u32 s2, 256"); p(f"s_cbranch_scc1 {name}_end")
    if code:
        p("s_getpc_b64 s[4:5]"); p("s_lshr_b32 s6, s2, 3"); p("v_lshlrev_b32 v1, 7, v0"); p("s_cmp_ge_u32 s6, 3"); p(f"s_cbranch_scc1 {name}_d")
        p("s_lshl_b32 s6, s6, 15"); p("v_add_u32 v1, s6, v1"); p("v_min_u32 v1, 0x13f00, v1"); p("global_load_dword v2, v1, s[4:5]")
    p.label(f"{name}_d")
    if data:
        p("v_lshl_add_u32 v1, s2, 8, v0"); p("v_lshlrev_b32 v1, 7, v1")
        for k in ("q", "k", "v", "ssmk", "ckv", "wq", "wuk", "wuv", "wo"):
            p(f"s_load_dwordx2 s[4:5], s[0:1], {ARG[k]}"); p("s_waitcnt lgkmcnt(0)"); srd(p, 8, 4, SZ[k]); p("buffer_load_dword v2, v1, s[8:11], 0 offen")
    p("s_waitcnt vmcnt(0)")
    p.label(f"{name}_end"); p("s_endpgm"); p.fix_hazards()
    return kernel_head(name) + p.text(), kernel_desc(name, 8, 8), f"; @launch kernel={name} grid=(256,1,1) block=(256,1,1) lds=0"
k3 = gen_k3("k3_kernel", sleep=100, prio_gemm=0, prio_conv=2)
base = [gen_prep("prep_kernel", True), gen_k1("k1_kernel"), gen_k2("k2_kernel"), k3]
assemble(base, "h0.s")
assemble(base + [empty("e1_kernel")], "h1.s")
assemble([empty("e1_kernel")] + base, "h2.s")
assemble([touch("t_kernel", True, False)] + base, "h3.s")
assemble([touch("t_kernel", False, True)] + base, "h4.s")
assemble([touch("t_kernel", True, True)] + base, "h5.s")
```

```python
from build import HEADER
from core import *
from layout import *
from k1 import gen_k1, srd
from k2 import gen_k2
from k3 import gen_k3
from prep import gen_prep
def asm(parts, order, path):
    txt = HEADER + "\n".join(parts[i][2] for i in order) + '\n.amdgcn_target "amdgcn-amd-amdhsa--gfx950"\n'
    for b, d, l in parts: txt += b
    for b, d, l in parts: txt += d
    open(path, 'w').write(txt)
k3 = gen_k3("k3_kernel", sleep=100, prio_gemm=0, prio_conv=2)
base = [gen_prep("prep_kernel", True), gen_k1("k1_kernel"), gen_k2("k2_kernel"), k3]
asm(base, [0,1,2,3], "h0.s")
asm(base, [0,0,1,2,3], "h1.s")
asm(base, [0,1,1,2,3], "h2.s")
asm(base, [0,1,2,2,3], "h3.s")
asm(base, [0,1,2,3,3], "h4.s")
asm(base, [0,1,2,3,0,1,2,3], "h5.s")
```
